```python
import torch

def _softmax(x, axis=-1):
    return torch.softmax(x, dim=axis)

def _gelu(x):
    return torch.nn.functional.gelu(x, approximate='tanh')

def _silu(x):
    return torch.nn.functional.silu(x)

def _sigmoid(x):
    return torch.sigmoid(x)

def _layernorm(x, axis=-1, eps=1e-05):
    m = x.mean(dim=axis, keepdim=True)
    v = x.var(dim=axis, keepdim=True, unbiased=False)
    return (x - m) / torch.sqrt(v + eps)

def _scatter_add(tgt, idx, src, axis=0):
    return tgt.clone().index_add_(axis, idx, src)

def _segment_sum(src, seg, n):
    out = torch.zeros((n,) + src.shape[1:], dtype=src.dtype)
    return out.index_add_(0, seg, src)

def _pad(x, pw):
    flat = tuple((v for pair in reversed(pw) for v in pair))
    return torch.nn.functional.pad(x, flat)
kernel_name = 'concat_heads__memory_aug_recurrent_mem_tr__sliding_block__prompt'

def setup_inputs():

    _w = lambda a: (lambda t: t.to(torch.bfloat16) if t.is_floating_point() else t)(torch.as_tensor(a))

    def _A_setup():
        B, S, Dm = (1, 2048, 640)
        H, Dh = (32, 128)
        M, seg = (8, 32)
        seg = min(seg, S)
        S = S // seg * seg
        return {'x': _w((lambda *s: torch.randn(*s, dtype=torch.bfloat16) * 0.05)(B, S, Dm)), 'mem0': _w((lambda *s: torch.randn(*s, dtype=torch.bfloat16) * 1.6)(B, M, Dm)), 'Wq': _w((lambda *s: torch.randn(*s, dtype=torch.bfloat16) * 0.8)(Dm, H, Dh) * Dm ** (-0.5)), 'Wk': _w((lambda *s: torch.randn(*s, dtype=torch.bfloat16) * 0.8)(Dm, H, Dh) * Dm ** (-0.5)), 'Wv': _w((lambda *s: torch.randn(*s, dtype=torch.bfloat16) * 1.6)(Dm, H, Dh) * Dm ** (-0.5)), 'Wo': _w((lambda *s: torch.randn(*s, dtype=torch.bfloat16) * 1.6)(H, Dh, Dm) * (H * Dh) ** (-0.5)), 'seg_len': seg}
    _A_in = _A_setup()

    def _B_setup():
        B, S, D = (1, 2048, 640)
        return {'x': _w((lambda *s: torch.randn(*s, dtype=torch.bfloat16) * 0.2)(B, S, D)), 'wqkv': _w((lambda *s: torch.randn(*s, dtype=torch.bfloat16) * 0.2)(D, 3 * D)), 'wo': _w((lambda *s: torch.randn(*s, dtype=torch.bfloat16) * 0.05)(D, D))}
    _B_in = _B_setup()
    return {'A_x': _A_in['x'], 'A_mem0': _A_in['mem0'], 'A_Wq': _A_in['Wq'], 'A_Wk': _A_in['Wk'], 'A_Wv': _A_in['Wv'], 'A_Wo': _A_in['Wo'], 'A_seg_len': _A_in['seg_len'], 'B_x': _B_in['x'], 'B_wqkv': _B_in['wqkv'], 'B_wo': _B_in['wo']}

def reference(A_x, A_mem0, A_Wq, A_Wk, A_Wv, A_Wo, A_seg_len, B_x, B_wqkv, B_wo):

    def _A_ref(x, mem0, Wq, Wk, Wv, Wo, seg_len):
        B, S, Dm = x.shape
        H, Dh = (Wq.shape[1], Wq.shape[2])
        M = mem0.shape[1]
        scale = Dh ** (-0.5)
        n_seg = S // seg_len
        L = M + seg_len
        idx = torch.arange(L)
        mask = (idx[:, None] < M) | (idx[:, None] >= idx[None, :])
        mem = mem0
        outs = []
        for s in range(n_seg):
            xs = x[:, s * seg_len:(s + 1) * seg_len, :].clone()
            h = torch.concatenate([mem, xs], axis=1)
            q = torch.einsum('btd,dhe->bhte', h, Wq)
            k = torch.einsum('btd,dhe->bhte', h, Wk)
            v = torch.einsum('btd,dhe->bhte', h, Wv)
            scores = torch.einsum('bhqe,bhke->bhqk', q, k) * scale
            scores = torch.where(mask[None, None], scores, -1000000000.0)
            p = _softmax(scores, axis=-1)
            o = torch.einsum('bhqk,bhke->bhqe', p, v)
            o = torch.einsum('bhte,hed->btd', o, Wo)
            mem = o[:, :M, :].clone()
            outs.append(o[:, M:, :])
        return torch.concatenate(outs, axis=1)

    def _B_ref(x, wqkv, wo):
        B, S, D = x.shape
        H = 32
        Dh = D // H
        W = 256
        qkv = (lambda x, *d: x.permute(*d))((x @ wqkv).reshape(B, S, 3, H, Dh), 2, 0, 3, 1, 4)
        q, k, v = (qkv[0], qkv[1], qkv[2])
        scores = torch.einsum('bhqd,bhkd->bhqk', q, k) * Dh ** (-0.5)
        idx = torch.arange(S)
        mask = (idx[:, None] - idx[None, :] >= 0) & (idx[:, None] - idx[None, :] < W)
        scores = torch.where(mask[None, None], scores, -1000000000.0)
        p = _softmax(scores, axis=-1)
        o = torch.einsum('bhqk,bhkd->bhqd', p, v)
        return (lambda x, *d: x.permute(*d))(o, 0, 2, 1, 3).reshape(B, S, D) @ wo
    a = _A_ref(A_x, A_mem0, A_Wq, A_Wk, A_Wv, A_Wo, A_seg_len)
    b = _B_ref(B_x, B_wqkv, B_wo)
    return torch.concatenate([a, b], axis=-1)
```

```python
import re

_REG = re.compile(r'^(-|\|)?(abs\()?([vas])(\d+|\[(\d+):(\d+)\])\)?\|?$')


def regs_of(tok):
    tok = tok.strip()
    if tok in ('vcc', 'vcc_lo', 'vcc_hi'):
        return {('s', 'vcc')}
    if tok in ('exec', 'exec_lo', 'exec_hi'):
        return {('s', 'exec')}
    if tok == 'm0':
        return {('s', 'm0')}
    m = _REG.match(tok)
    if not m:
        return set()
    f = m.group(3)
    if m.group(5) is not None:
        return {(f, i) for i in range(int(m.group(5)), int(m.group(6)) + 1)}
    return {(f, int(m.group(4)))}


TRANS = ('v_exp_f32', 'v_log_f32', 'v_rcp_f32', 'v_rsq_f32', 'v_sqrt_f32', 'v_sin_f32', 'v_cos_f32')


class Ins:
    __slots__ = ('text', 'op', 'ops', 'mods', 'defs', 'uses', 'kind', 'passes', 'srcc', 'dpp', 'label', 'target',
                 'states', 'sdata', 'sab')

    def __init__(self, text):
        self.text = text
        t = text.split(';')[0].strip()
        self.label = None
        self.target = None
        self.defs = set()
        self.uses = set()
        self.kind = 'other'
        self.passes = 0
        self.srcc = set()
        self.sab = set()
        self.sdata = set()
        self.dpp = False
        self.states = 1
        self.op = ''
        self.ops = []
        self.mods = ''
        if not t:
            self.kind = 'comment'
            self.states = 0
            return
        if t.endswith(':'):
            self.label = t[:-1]
            self.kind = 'label'
            self.states = 0
            return
        if t.startswith('.'):
            self.kind = 'dir'
            self.states = 0
            return
        parts = t.split(None, 1)
        op = self.op = parts[0]
        rest = parts[1] if len(parts) > 1 else ''
        ops, cur, depth = [], '', 0
        for ch in rest:
            if ch in '[(':
                depth += 1
            if ch in '])':
                depth -= 1
            if ch == ',' and depth == 0:
                ops.append(cur.strip())
                cur = ''
            else:
                cur += ch
        if cur.strip():
            ops.append(cur.strip())
        if ops:
            last = ops[-1].split(None, 1)
            ops[-1] = last[0]
            self.mods = last[1] if len(last) > 1 else ''
        self.ops = ops
        R = [regs_of(o) for o in ops]
        allr = set().union(*R) if R else set()
        if op == 's_nop':
            self.kind = 'nop'
            self.states = int(ops[0], 0) + 1
        elif op == 's_waitcnt':
            self.kind = 'wait'
        elif op in ('s_branch',) or op.startswith('s_cbranch'):
            self.kind = 'branch'
            self.target = ops[0]
            if 'vcc' in op:
                self.uses = {('s', 'vcc')}
            if 'exec' in op:
                self.uses = {('s', 'exec')}
        elif op.startswith('s_load') or op.startswith('s_memtime') or op.startswith('s_memrealtime') or op.startswith('s_buffer_load'):
            self.kind = 'smem'
            self.defs = R[0]
            self.uses = set().union(*R[1:]) if len(R) > 1 else set()
        elif op.startswith('s_'):
            self.kind = 'salu'
            if op.startswith('s_cmp') or op.startswith('s_bitcmp') or op in ('s_barrier', 's_endpgm', 's_setprio', 's_sleep', 's_setreg_b32'):
                self.uses = allr
            else:
                self.defs = set(R[0]) if R else set()
                self.uses = set().union(*R[1:]) if len(R) > 1 else set()
                if 'saveexec' in op:
                    self.defs |= {('s', 'exec')}
                    self.uses |= {('s', 'exec')}
                if op in ('s_addk_i32', 's_mulk_i32', 's_bitset1_b32', 's_bitset0_b32') or op.startswith('s_cmov'):
                    self.uses |= R[0]
        elif op.startswith('v_mfma') or op.startswith('v_smfmac'):
            self.kind = 'mfma'
            self.passes = 8 if '32x32' in op else 4
            self.defs = R[0]
            if op.startswith('v_smfmac'):
                self.srcc = R[0]
                self.sab = R[1] | R[2] | R[3]
            else:
                self.srcc = R[3]
                self.sab = R[1] | R[2]
            self.uses = self.srcc | self.sab
        elif op.startswith('v_'):
            self.kind = 'valu'
            self.dpp = ('row_' in self.mods or 'quad_perm' in self.mods or 'wave_' in self.mods)
            nd = 1
            if op.startswith(('v_add_co', 'v_sub_co', 'v_addc_co', 'v_subb_co', 'v_mad_u64', 'v_div_scale')):
                nd = 2
            if op.startswith('v_permlane') and 'swap' in op or op.startswith('v_swap'):
                self.defs = R[0] | R[1]
                self.uses = R[0] | R[1]
            elif op == 'v_nop':
                pass
            else:
                self.defs = set().union(*R[:nd])
                self.uses = set().union(*R[nd:]) if len(R) > nd else set()
                if op.startswith(('v_fmac', 'v_writelane', 'v_dot2c', 'v_pk_fmac')) or self.dpp or 'op_sel' in self.mods and not op.startswith('v_pk') or 'UNUSED_PRESERVE' in self.mods:
                    self.uses |= R[0]
                if op.startswith('v_cmpx'):
                    self.defs |= {('s', 'exec')}
        elif op.startswith('ds_'):
            self.kind = 'ds'
            if op.startswith(('ds_read', 'ds_bpermute', 'ds_permute', 'ds_swizzle')) or '_rtn' in op:
                self.defs = R[0]
                self.uses = set().union(*R[1:])
            else:
                self.uses = allr
        elif op.startswith(('global_', 'buffer_')):
            self.kind = 'vmem'
            islds = ('lds' in self.mods.split()) or '_lds_' in op
            if op in ('buffer_wbl2', 'buffer_inv'):
                pass
            elif islds:
                self.uses = allr | {('s', 'm0')}
            elif '_load' in op:
                self.defs = R[0]
                self.uses = set().union(*R[1:])
                if 'd16' in op:
                    self.uses |= R[0]
            elif '_atomic' in op:
                if 'sc0' in self.mods.split():
                    self.defs = R[0]
                    self.uses = set().union(*R[1:]) if op.startswith('global') else allr
                else:
                    self.uses = allr
            else:
                self.uses = allr
                if 'x3' in op or 'x4' in op:
                    self.sdata = R[1] if op.startswith('global') else R[0]
        else:
            raise ValueError('unknown op ' + text)


def isv(r):
    return r[0] in 'va'


def need_states(p, c):
    n = 0
    if p.kind == 'valu':
        vd = {r for r in p.defs if isv(r)}
        sd = {r for r in p.defs if r[0] == 's'}
        if c.kind == 'mfma':
            if vd & c.uses:
                n = max(n, 2)
            if ('s', 'exec') in sd:
                n = max(n, 4)
        if c.kind == 'valu':
            if c.dpp and vd & c.uses:
                n = max(n, 2)
            if c.dpp and ('s', 'exec') in sd:
                n = max(n, 5)
            if c.op.startswith('v_permlane'):
                if vd & c.uses:
                    n = max(n, 2)
                if ('s', 'exec') in sd:
                    n = max(n, 4)
            if c.op.startswith(('v_readlane', 'v_readfirstlane')):
                if vd & c.uses:
                    n = max(n, 1)
                if sd & c.uses or ('s', 'exec') in sd:
                    n = max(n, 4)
            if c.op.startswith('v_writelane') and (sd & c.uses or ('s', 'exec') in sd):
                n = max(n, 4)
            if sd & c.uses:
                n = max(n, 2)
            if p.op.startswith(TRANS) and vd & c.uses:
                n = max(n, 1)
            if ('op_sel' in p.mods or 'dst_sel' in p.mods) and vd & (c.uses | c.defs):
                n = max(n, 1)
        if c.kind == 'vmem' and sd & c.uses:
            n = max(n, 5)
        if c.kind in ('salu', 'smem') and sd & c.uses:
            n = max(n, 1)
        if c.kind in ('ds', 'vmem') and p.op.startswith(TRANS) and vd & c.uses:
            n = max(n, 1)
    elif p.kind == 'salu':
        if ('s', 'm0') in p.defs and c.kind in ('vmem', 'ds') and ('s', 'm0') in c.uses:
            n = max(n, 1)
    elif p.kind == 'mfma':
        big = {4: 8, 8: 12}[p.passes]
        if c.kind == 'mfma':
            if p.defs & c.sab:
                n = max(n, big)
            ov = p.defs & c.srcc
            if ov:
                if not (p.defs == c.srcc and p.passes == c.passes):
                    n = max(n, {4: 6, 8: 10}[p.passes])
            elif p.defs & c.defs and p.passes != c.passes:
                n = max(n, big)
        elif c.kind in ('valu', 'ds', 'vmem'):
            if p.defs & (c.uses | c.defs):
                n = max(n, big)
            if c.kind == 'valu' and p.srcc & c.defs:
                n = max(n, {4: 3, 8: 7}[p.passes])
    elif p.kind == 'vmem':
        if p.sdata and p.sdata & c.defs:
            n = max(n, 2 if c.kind in ('valu', 'mfma') else 1)
    return n


class Asm:
    def __init__(self):
        self.ins = []
        self.uid = 0
        self.auto = True
        self.vm = []
        self.lg = []

    def _apply_wait(self, c):
        t = c.text.split(';')[0]
        m = re.search(r'vmcnt\((\d+)\)', t)
        if m:
            n = int(m.group(1))
            while len(self.vm) > n:
                self.vm.pop(0)
        m = re.search(r'lgkmcnt\((\d+)\)', t)
        if m:
            n = int(m.group(1))
            if n == 0:
                self.lg = []
            elif not any(sm for _, sm in self.lg):
                while len(self.lg) > n:
                    self.lg.pop(0)

    def _emit(self, c):
        if c.kind == 'wait':
            self._apply_wait(c)
            self.ins.append(c)
            return
        if c.label:
            if self.vm:
                self.vm = [set().union(*self.vm)]
            if self.lg:
                self.lg = [(set().union(*[d for d, _ in self.lg]), any(sm for d, sm in self.lg))]
            self.ins.append(c)
            return
        if c.states and self.auto:
            touched = c.uses | c.defs
            nv = nl = None
            for i, d in enumerate(self.vm):
                if d & (touched if c.kind != 'vmem' else c.uses):
                    nv = len(self.vm) - 1 - i
            for i, (d, sm) in enumerate(self.lg):
                if d & (touched if c.kind != 'ds' or sm else c.uses):
                    nl = 0 if sm else len(self.lg) - 1 - i
            if nl is not None and nl > 0:
                young = self.lg[len(self.lg) - nl:]
                nl -= sum(1 for _, sm in young if sm)
                keep = [e for e in young]
                w = Ins('s_waitcnt ' + ('vmcnt(%d) ' % min(nv, 63) if nv is not None else '') + 'lgkmcnt(%d)' % min(nl, 15))
                if nv is not None:
                    while len(self.vm) > nv:
                        self.vm.pop(0)
                older_smem = [e for e in self.lg[:len(self.lg) - len(young)] if e[1]]
                self.lg = (older_smem + keep) if nl > 0 else []
                self.ins.append(w)
            elif nv is not None or nl is not None:
                w = Ins('s_waitcnt ' + ('vmcnt(%d) ' % min(nv, 63) if nv is not None else '') + ('lgkmcnt(0)' if nl is not None else ''))
                self._apply_wait(w)
                self.ins.append(w)
        if c.kind == 'vmem':
            self.vm.append(set(c.defs))
        elif c.kind == 'ds':
            self.lg.append((set(c.defs), False))
        elif c.kind == 'smem':
            self.lg.append((set(c.defs), True))
        self.ins.append(c)
        if c.op in ('s_branch', 's_endpgm'):
            self.vm = []
            self.lg = []

    def assume(self, vm='', lg=''):
        if vm:
            d = set().union(*[regs_of(x) for x in vm.split()])
            self.vm = [set().union(d, *self.vm)]
        if lg:
            d = set().union(*[regs_of(x) for x in lg.split()])
            self.lg = [(set().union(d, *[x for x, _ in self.lg]), any(sm for _, sm in self.lg))]

    def __call__(self, text):
        for line in text.split('\n'):
            line = line.strip()
            if line:
                self._emit(Ins(line))

    def label(self, name, keep=False):
        if keep:
            self.ins.append(Ins(name + ':'))
        else:
            self._emit(Ins(name + ':'))

    def tag(self, name):
        self.vm[-1].add(('tag', name))

    def wait_tag(self, name):
        n = None
        for i, d in enumerate(self.vm):
            if ('tag', name) in d:
                n = len(self.vm) - 1 - i
        if n is not None:
            self('s_waitcnt vmcnt(%d)' % min(n, 63))

    def newlabel(self, base):
        self.uid += 1
        return '%s_%d' % (base, self.uid)

    def pad(self, verbose=False, mfma_time=True):
        W = 14
        out = []
        npad = 0

        def required(window, c):
            win = [p for p in window if p.states]
            need = 0
            dist = 0
            for k in range(len(win) - 1, -1, -1):
                p = win[k]
                ns = need_states(p, c)
                if ns > dist:
                    d = dist
                    if p.kind == 'mfma' and mfma_time:
                        occ = lambda z: 2 if '16x16x16' in z.op else z.passes
                        t, last, lp = 0, 0, occ(p)
                        prev = p
                        for x in win[k + 1:]:
                            t += prev.states
                            if x.kind == 'mfma':
                                t = max(t, last + lp)
                                last, lp = t, occ(x)
                            prev = x
                        t += prev.states
                        if c.kind == 'mfma' and last + lp - 1 >= ns:
                            t = max(t, last + lp)
                        d = t - 1
                    need = max(need, ns - d)
                dist += p.states
                if dist >= W:
                    break
            return need

        def back_window(lst):
            w = []
            d = 0
            for p in reversed(lst):
                if p.op in ('s_branch', 's_endpgm'):
                    break
                w.append(p)
                d += p.states
                if d >= W:
                    break
            return w[::-1]
        for c in self.ins:
            if c.states and c.kind != 'nop':
                need = required(back_window(out), c)
                if need > 0:
                    out.append(Ins('s_nop %d' % (need - 1)))
                    npad += 1
            out.append(c)
        changed = True
        while changed:
            changed = False
            labels = {x.label: i for i, x in enumerate(out) if x.label}
            for i, b in enumerate(out):
                if b.kind != 'branch' or b.target not in labels:
                    continue
                win = back_window(out[:i]) + [Ins('s_nop 0')]
                worst = 0
                stack = [(labels[b.target], list(win), 0)]
                while stack:
                    j, wv, d = stack.pop()
                    while j < len(out) and d < W:
                        c = out[j]
                        if c.states:
                            if c.kind != 'nop':
                                worst = max(worst, required(win + [Ins('s_nop %d' % (d - 1))] if d else win, c))
                            d += c.states
                            if c.op == 's_endpgm':
                                break
                            if c.kind == 'branch' and c.target in labels:
                                stack.append((labels[c.target], wv, d))
                                if c.op == 's_branch':
                                    break
                        j += 1
                if worst > 0:
                    out.insert(i, Ins('s_nop %d' % (worst - 1)))
                    npad += 1
                    changed = True
                    break
        self.ins = out
        if verbose:
            print('pads inserted:', npad)

    def text(self):
        return '\n'.join(('' if (x.label or x.kind == 'dir') else '    ') + x.text for x in self.ins) + '\n'


def scoreboard(ins_list, name=''):
    vm = []
    lg = []
    probs = []
    for k, c in enumerate(ins_list):
        if c.states == 0:
            continue
        if c.kind == 'wait':
            t = c.text.split(';')[0]
            m = re.search(r'vmcnt\((\d+)\)', t)
            if m:
                n = int(m.group(1))
                while len(vm) > n:
                    vm.pop(0)
            m = re.search(r'lgkmcnt\((\d+)\)', t)
            if m:
                n = int(m.group(1))
                if n == 0:
                    lg = []
                elif not any(s for _, s in lg):
                    while len(lg) > n:
                        lg.pop(0)
            continue
        touched = c.uses | c.defs
        for d in vm:
            bad = d & (touched if c.kind != 'vmem' else c.uses)
            if bad:
                probs.append('%s: vm hazard at %d: %s regs %s' % (name, k, c.text, sorted(bad, key=str)[:4]))
                break
        for d, s in lg:
            bad = d & (touched if c.kind != 'ds' else c.uses)
            if bad:
                probs.append('%s: lgkm hazard at %d: %s regs %s' % (name, k, c.text, sorted(bad, key=str)[:4]))
                break
        if c.kind == 'vmem':
            vm.append(set(c.defs))
            if len(vm) > 63:
                vm.pop(0)
        elif c.kind == 'ds':
            lg.append((set(c.defs), False))
        elif c.kind == 'smem':
            lg.append((set(c.defs), True))
    return probs


def v(i, n=1):
    return 'v%d' % i if n == 1 else 'v[%d:%d]' % (i, i + n - 1)


def a(i, n=1):
    return 'a%d' % i if n == 1 else 'a[%d:%d]' % (i, i + n - 1)


def s(i, n=1):
    return 's%d' % i if n == 1 else 's[%d:%d]' % (i, i + n - 1)


def r(i, n=1):
    return v(i, n) if i < 256 else a(i - 256, n)
```

```python
from asmdsl import *
from layout import *
from gen_rec import S_W, SRD_WS, SRD_DBG, S_TMO, S_T0, S_T1, S_T2, S_T3, TMO, f32bits
import math

S_R = 21
SRD_A = 's[8:11]'
SRD_X = 's[12:15]'
SRD_O = 's[24:27]'
S_WOFF, S_XOFF, S_OOFF, S_N, S_I, S_BUF, S_NBUF, S_FLAG, S_LW, S_OST, S_CADJ = 37, 38, 39, 40, 41, 42, 43, 44, 45, 46, 47
OOB = 0x10000000
WREG = 96


def lane_id(A, d):
    A('v_mbcnt_lo_u32_b32 v%d, -1, 0\nv_mbcnt_hi_u32_b32 v%d, -1, v%d' % (d, d, d))


def srd(A, base, karg, nbytes):
    A('s_load_dwordx2 s[%d:%d], s[0:1], %d\ns_mov_b32 s%d, %d\ns_mov_b32 s%d, 0x20000' % (base, base + 1, karg, base + 2, nbytes, base + 3))


def arrive(A, off):
    A('s_waitcnt vmcnt(0)\ns_barrier')
    lane_id(A, 14)
    A('v_or_b32 v14, s%d, v14\nv_cmp_eq_u32 vcc, 0, v14\nv_mov_b32 v14, 0x1000\nv_mov_b32 v15, %d\nv_cndmask_b32 v14, v14, v15, vcc\nv_mov_b32 v15, 1' % (S_W, off))
    A('buffer_atomic_add v15, v14, %s, 0 offen' % SRD_DBG)


def await_count(A, off, count):
    lab = A.newlabel('L_aw')
    A('s_mov_b32 s%d, %d' % (S_TMO, TMO))
    A.label(lab)
    A('buffer_load_dword v14, off, %s, 0 offset:%d sc1' % (SRD_DBG, off))
    A('s_sub_u32 s%d, s%d, 1\ns_cbranch_scc1 L_abort' % (S_TMO, S_TMO))
    A('s_waitcnt vmcnt(0)')
    A('v_readfirstlane_b32 s%d, v14' % S_T0)
    A('s_sleep 4')
    A('s_cmp_lt_u32 s%d, %d\ns_cbranch_scc1 %s' % (S_T0, count, lab))


def load_w(A, pitch, masked):
    L, T1, T2, DA, TA = 10, 11, 12, 13, 14
    lane_id(A, L)
    A('v_lshrrev_b32 v%d, 2, v%d\nv_mul_u32_u24 v%d, %d, v%d' % (T1, L, T1, pitch, T1))
    A('v_and_b32 v%d, 3, v%d\nv_lshl_add_u32 v%d, v%d, 4, v%d' % (T2, L, DA, T2, T1))
    A('s_mul_i32 s%d, s%d, 40960' % (S_LW, S_W))
    A('s_waitcnt lgkmcnt(0)\ns_barrier')
    for i in range(40):
        A('s_add_u32 m0, s%d, %d\ns_add_u32 s%d, s%d, %d' % (S_LW, i * 1024, S_T0, S_WOFF, i * 16 * pitch))
        A('buffer_load_dwordx4 v%d, %s, s%d offen lds' % (DA, SRD_A, S_T0))
        A.tag('w%d' % i)
    A('v_lshrrev_b32 v%d, 5, v%d\nv_bfe_u32 v%d, v%d, 2, 2\nv_lshl_add_u32 v%d, v%d, 3, v%d' % (T1, L, T2, L, T1, T1, T2))
    A('v_lshlrev_b32 v%d, 6, v%d\nv_bfe_u32 v%d, v%d, 4, 1\nv_lshl_add_u32 v%d, v%d, 5, v%d' % (T1, T1, T2, L, T1, T2, T1))
    A('v_and_b32 v%d, 3, v%d\nv_lshl_add_u32 v%d, v%d, 3, v%d' % (T2, L, T1, T2, T1))
    A('s_add_u32 s%d, s%d, s%d\nv_add_u32 v%d, s%d, v%d' % (S_T0, S_LW, S_CADJ, TA, S_T0, T1))
    for i in range(40):
        A.wait_tag('w%d' % i)
        for Q in range(2):
            A('ds_read_b64_tr_b16 %s, v%d offset:%d' % (v(WREG + 4 * i + 2 * Q, 2), TA, i * 1024 + Q * 256))
    A('s_waitcnt lgkmcnt(0)')
    if masked:
        A('v_and_b32 v%d, 31, v%d\nv_cmp_gt_u32 vcc, 20, v%d' % (T1, L, T1))
        for i in range(160):
            A('v_cndmask_b32 v%d, 0, v%d, vcc' % (WREG + i, WREG + i))
    A('s_barrier')


def stream(A, name, swap, xsrd, xsc, epi, oseg, flag):
    L, T1, T2, DX = 10, 11, 12, 13
    RB, RA, ACC, OPB, PK, ONE = 16, 20, 32, 56, 48, 24
    NB = 8
    lane_id(A, L)
    A('v_lshrrev_b32 v%d, 3, v%d\ns_lshl_b32 s%d, s%d, 3\nv_add_u32 v%d, s%d, v%d' % (T1, L, S_T0, S_W, T1, S_T0, T1))
    A('v_lshrrev_b32 v%d, 1, v%d\nv_xor_b32 v%d, v%d, v%d\nv_and_b32 v%d, 7, v%d' % (T2, T1, T2, T2, L, T2, T2))
    A('v_mul_u32_u24 v%d, 1280, v%d\nv_lshl_add_u32 v%d, v%d, 4, v%d' % (T1, T1, DX, T2, T1))
    A('v_bfe_u32 v%d, v%d, 3, 2\nv_mul_u32_u24 v%d, 10240, v%d' % (T1, L, T1, T1))
    A('v_and_b32 v%d, 7, v%d\nv_lshl_add_u32 v%d, v%d, 7, v%d' % (T2, L, T1, T2, T1))
    A('v_bfe_u32 v%d, v%d, 1, 3\nv_lshrrev_b32 v15, 5, v%d\nv_xor_b32 v%d, v%d, v15' % (T2, L, L, T2, T2))
    for k in range(4):
        A('v_xor_b32 v15, %d, v%d\nv_lshl_add_u32 v%d, v15, 4, v%d' % (2 * k, T2, RB + k, T1))
    if epi == 'ones':
        A('v_and_b32 v%d, 27, v%d\nv_cmp_eq_u32 s[28:29], 24, v%d\nv_mov_b32 v%d, 0x3f803f80' % (T1, L, T1, ONE))
    A('s_mul_i32 s%d, s%d, 10240' % (S_LW, S_W))

    def dma(kb):
        A('s_add_u32 m0, s%d, %d' % (S_NBUF, kb * 896))
        A('buffer_load_dwordx4 v%d, %s, s%d offen offset:%d%s lds' % (DX, xsrd, S_XOFF, kb * 128, xsc))

    def adv():
        A('s_add_u32 s%d, s%d, 40960' % (S_XOFF, S_XOFF))
    nst = 4 if epi == 'out' else 2
    per = 10 + nst + (1 if flag else 0)
    A.auto = False
    for b in range(2):
        A('s_add_u32 s%d, s%d, %d' % (S_NBUF, S_LW, b * 40960))
        for kb in range(10):
            dma(kb)
        adv()
        if b == 0:
            A('s_cmp_lt_u32 1, s%d\ns_cselect_b32 s%d, s%d, %d' % (S_N, S_XOFF, S_XOFF, OOB))
    A('s_mov_b32 s%d, 0\ns_mov_b32 s%d, 0\ns_mov_b32 s%d, %d' % (S_I, S_BUF, S_OST, OOB))
    A('s_waitcnt vmcnt(10)')

    def epilogue():
        if epi == 'out':
            for q in range(4):
                A('v_cvt_pk_bf16_f32 v%d, v%d, v%d\nv_cvt_pk_bf16_f32 v%d, v%d, v%d' % (PK + 2 * q, ACC + 4 * q, ACC + 4 * q + 1, PK + 2 * q + 1, ACC + 4 * q + 2, ACC + 4 * q + 3))
            for q in range(4):
                A('buffer_store_dwordx2 %s, v9, %s, s%d offen offset:%d' % (v(PK + 2 * q, 2), SRD_O, S_OST, 16 * q))
            return
        for a_ in range(2):
            for hq, q in enumerate((a_, a_ + 2)):
                d = PK + 4 * a_ + 2 * hq
                A('v_cvt_pk_bf16_f32 v%d, v%d, v%d\nv_cvt_pk_bf16_f32 v%d, v%d, v%d' % (d, ACC + 4 * q, ACC + 4 * q + 1, d + 1, ACC + 4 * q + 2, ACC + 4 * q + 3))
        if epi == 'ones':
            for i in range(8):
                A('v_cndmask_b32 v%d, v%d, v%d, s[28:29]' % (PK + i, PK + i, ONE))
        for a_ in range(2):
            A('buffer_store_dwordx4 %s, v9, %s, s%d offen offset:%d sc1' % (v(PK + 4 * a_, 4), SRD_WS, S_OST, a_ * (512 if flag else 1024)))
    top = name + '_top'
    A.label(top)
    A('s_barrier')
    for k in range(4):
        A('v_add_u32 v%d, s%d, v%d' % (RA + k, S_BUF, RB + k))

    def rd(kk):
        A('ds_read_b128 %s, v%d offset:%d' % (v(OPB + 4 * (kk % NB), 4), RA + (kk & 3), (kk >> 2) * 1024))
    for kk in range(NB - 1):
        rd(kk)
    if flag:
        A('s_max_i32 s%d, s%d, 2\ns_sub_u32 s%d, s%d, 2\nv_mov_b32 v15, s%d' % (S_T0, S_I, S_T0, S_T0, S_T0))
        A('buffer_store_dword v15, off, %s, s%d sc1' % (SRD_WS, S_FLAG))
    epilogue()
    A('s_add_u32 s%d, s%d, 81920\ns_cmp_ge_u32 s%d, 122880\ns_cselect_b32 s%d, 122880, 0\ns_sub_u32 s%d, s%d, s%d' % (S_NBUF, S_BUF, S_NBUF, S_T0, S_NBUF, S_NBUF, S_T0))
    A('s_add_u32 s%d, s%d, s%d' % (S_NBUF, S_NBUF, S_LW))
    A('s_add_u32 s%d, s%d, 2\ns_cmp_lt_u32 s%d, s%d\ns_cselect_b32 s%d, s%d, %d' % (S_T0, S_I, S_T0, S_N, S_XOFF, S_XOFF, OOB))
    for kk in range(40):
        left = min(NB - 2, 39 - kk)
        A('s_waitcnt lgkmcnt(%d)' % left)
        x, w = v(OPB + 4 * (kk % NB), 4), v(WREG + 4 * kk, 4)
        A('v_mfma_f32_32x32x16_bf16 %s, %s, %s, %s' % (v(ACC, 16), x if swap else w, w if swap else x, v(ACC, 16) if kk else '0'))
        if kk + NB - 1 < 40:
            rd(kk + NB - 1)
        if kk % 4 == 1:
            dma(kk // 4)
    adv()
    A('s_mov_b32 s%d, s%d\ns_add_u32 s%d, s%d, %d' % (S_OST, S_OOFF, S_OOFF, S_OOFF, oseg))
    A('s_add_u32 s%d, s%d, 40960\ns_cmp_ge_u32 s%d, 122880\ns_cselect_b32 s%d, 0, s%d' % (S_BUF, S_BUF, S_BUF, S_BUF, S_BUF))
    A('s_add_u32 s%d, s%d, 1\ns_cmp_lt_u32 s%d, s%d' % (S_I, S_I, S_I, S_N))
    A('s_waitcnt vmcnt(%d)' % per)
    A('s_cbranch_scc1 %s' % top)
    epilogue()
    A('s_waitcnt vmcnt(0)')
    if flag:
        A('s_barrier\nv_mov_b32 v15, s%d' % S_N)
        A('buffer_store_dword v15, off, %s, s%d sc1' % (SRD_WS, S_FLAG))
    A.auto = True
    A.vm = []
    A.lg = []


def role_p(A, check):
    A('s_lshr_b32 s48, s%d, 5\ns_and_b32 s49, s%d, 31' % (S_R, S_R))
    A('s_load_dwordx4 s[52:55], s[0:1], 16\ns_load_dwordx2 s[56:57], s[0:1], 32')
    srd(A, 12, 0, 2621440)
    A('s_mov_b32 s10, 5242880\ns_mov_b32 s11, 0x20000')
    A('s_waitcnt lgkmcnt(0)')
    A('s_cmp_eq_u32 s48, 0\ns_cselect_b64 s[8:9], s[52:53], s[54:55]\ns_cmp_eq_u32 s48, 2\ns_cselect_b64 s[8:9], s[56:57], s[8:9]')
    A('s_lshl_b32 s%d, s49, 8\ns_lshl_b32 s%d, s%d, 6\ns_add_u32 s%d, s%d, s%d\ns_mov_b32 s%d, 0' % (S_WOFF, S_T0, S_W, S_WOFF, S_WOFF, S_T0, S_CADJ))
    load_w(A, 8192, False)
    A.mark(1)
    check()
    A.mark(2)
    A('s_lshl_b32 s%d, s48, 24\ns_lshl_b32 s%d, s49, 13\ns_add_u32 s%d, s%d, s%d' % (S_OOFF, S_T0, S_OOFF, S_OOFF, S_T0))
    A('s_lshl_b32 s%d, s%d, 11\ns_add_u32 s%d, s%d, s%d\ns_add_u32 s%d, s%d, %d' % (S_T0, S_W, S_OOFF, S_OOFF, S_T0, S_OOFF, S_OOFF, QA))
    A('s_lshl_b32 s%d, s%d, 7\ns_add_u32 s%d, s%d, %d' % (S_FLAG, S_R, S_FLAG, S_FLAG, F1))
    A('s_cmp_eq_u32 s%d, 0\ns_cselect_b32 s%d, s%d, %d' % (S_W, S_FLAG, S_FLAG, OOB))
    A('s_mov_b32 s%d, 0\ns_mov_b32 s%d, 64' % (S_XOFF, S_N))
    lane_id(A, 10)
    A('v_bfe_u32 v11, v10, 4, 1\nv_lshlrev_b32 v11, 10, v11\nv_lshrrev_b32 v12, 5, v10\nv_lshl_add_u32 v11, v12, 8, v11')
    A('v_and_b32 v12, 15, v10\nv_lshl_add_u32 v9, v12, 4, v11')
    A('s_cmp_eq_u32 s48, 2\ns_cbranch_scc1 L_pv')
    stream(A, 'L_pqk', False, SRD_X, '', 'gran', 32 * 8192, True)
    A('s_branch L_pdone')
    A.label('L_pv')
    stream(A, 'L_pv', True, SRD_X, '', 'gran', 32 * 8192, True)
    A.label('L_pdone')


def role_b(A, check, opt):
    A('s_cmp_ge_u32 s%d, 48\ns_cbranch_scc1 L_b_idle' % S_R)
    A('s_cmp_ge_u32 s%d, 24\ns_cselect_b32 s50, 1, 0\ns_mul_i32 s%d, s50, 24\ns_sub_u32 s51, s%d, s%d' % (S_R, S_T0, S_R, S_T0))
    A('s_lshr_b32 s48, s51, 3\ns_and_b32 s49, s51, 7\ns_lshl_b32 s49, s49, 2\ns_add_u32 s49, s49, s%d' % S_W)
    srd(A, 8, 64, 640 * 3840)
    srd(A, 12, 56, 2621440)
    A('s_mul_i32 s%d, s48, 1280\ns_mul_i32 s%d, s49, 40\ns_add_u32 s%d, s%d, s%d' % (S_WOFF, S_T0, S_WOFF, S_WOFF, S_T0))
    A('s_and_b32 s%d, s%d, 8\ns_sub_u32 s%d, s%d, s%d' % (S_CADJ, S_WOFF, S_WOFF, S_WOFF, S_CADJ))
    load_w(A, 3840, True)
    A.mark(1)
    check()
    A.mark(2)
    A('s_mul_i32 s%d, s50, %d\ns_mov_b32 s%d, 32' % (S_XOFF, 32 * 40960, S_N))
    A('s_lshl_b32 s%d, s48, 22\ns_lshl_b32 s%d, s50, 21\ns_add_u32 s%d, s%d, s%d' % (S_OOFF, S_T0, S_OOFF, S_OOFF, S_T0))
    A('s_lshl_b32 s%d, s49, 11\ns_add_u32 s%d, s%d, s%d\ns_add_u32 s%d, s%d, %d' % (S_T0, S_OOFF, S_OOFF, S_T0, S_OOFF, S_OOFF, QB))
    lane_id(A, 10)
    A('v_lshlrev_b32 v9, 4, v10')
    A('s_cmp_eq_u32 s48, 2\ns_cbranch_scc1 L_bv')
    stream(A, 'L_bqk', False, SRD_X, '', 'gran', 65536, False)
    A('s_branch L_b1')
    A.label('L_bv')
    stream(A, 'L_bv', True, SRD_X, '', 'ones', 65536, False)
    A.label('L_b1')
    A.mark(3)
    arrive(A, D_BAR1)
    A('s_branch L_b2')
    A.label('L_b_idle')
    check()
    A.label('L_b2')
    await_count(A, D_BAR1, 48)
    A.mark(4)
    attention_b(A)
    A.mark(5)
    arrive(A, D_BAR2)
    A('s_cmp_ge_u32 s%d, 55\ns_cbranch_scc1 L_abort' % S_R)
    A('s_mul_i32 s50, s%d, 52\ns_lshr_b32 s50, s50, 8\ns_mul_i32 s%d, s50, 5\ns_sub_u32 s51, s%d, s%d' % (S_R, S_T0, S_R, S_T0))
    srd(A, 8, 72, 640 * 1280)
    srd(A, 24, 80, 2048 * 2560)
    A('s_lshl_b32 s%d, s51, 8\ns_lshl_b32 s%d, s%d, 6\ns_add_u32 s%d, s%d, s%d\ns_mov_b32 s%d, 0' % (S_WOFF, S_T0, S_W, S_WOFF, S_WOFF, S_T0, S_CADJ))
    load_w(A, 1280, False)
    await_count(A, D_BAR2, 64)
    A('s_mul_i32 s%d, s50, %d\ns_add_u32 s%d, s%d, %d' % (S_XOFF, 6 * 40960, S_XOFF, S_XOFF, OB))
    A('s_mul_i32 s%d, s50, 6\ns_sub_u32 s%d, 64, s%d\ns_min_u32 s%d, s%d, 6' % (S_T0, S_N, S_T0, S_N, S_N))
    A('s_mul_i32 s%d, s50, %d\ns_add_u32 s%d, s%d, s%d\ns_add_u32 s%d, s%d, 1280' % (S_OOFF, 6 * 81920, S_OOFF, S_OOFF, S_WOFF, S_OOFF, S_OOFF))
    lane_id(A, 10)
    A('v_and_b32 v11, 31, v10\nv_mul_u32_u24 v11, 2560, v11\nv_lshrrev_b32 v12, 5, v10\nv_lshl_add_u32 v9, v12, 3, v11')
    stream(A, 'L_bo', False, SRD_WS, ' sc1', 'out', 81920, False)
    A.mark(6)
    A('s_endpgm')


def attention_b(A):
    S, QR, O, T = 32, 176, 184, 200
    KR, VR = 256, 256 + 72
    LIN, THR, OAD, NEG = 10, 11, 12, 13
    S_H, S_SEG, S_J, S_C = 48, 49, 50, 51
    A('s_lshl_b32 s%d, s%d, 2\ns_add_u32 s%d, s%d, s%d' % (S_T0, S_R, S_T0, S_T0, S_W))
    A('s_and_b32 s%d, s%d, 31\ns_lshr_b32 s%d, s%d, 5\ns_lshl_b32 s%d, s%d, 3\ns_mov_b32 s%d, 0' % (S_H, S_T0, S_SEG, S_T0, S_SEG, S_SEG, S_J))
    A('s_mov_b32 s%d, 0x%x' % (S_C, f32bits(20 ** -0.5 * math.log2(math.e))))
    lane_id(A, T)
    A('v_lshlrev_b32 v%d, 4, v%d' % (LIN, T))
    A('v_and_b32 v%d, 31, v%d\nv_lshrrev_b32 v%d, 5, v%d' % (T + 1, T, T + 2, T))
    A('v_lshlrev_b32 v%d, 2, v%d\nv_sub_u32 v%d, v%d, v%d' % (THR, T + 2, THR, T + 1, THR))
    A('v_mul_u32_u24 v%d, 1280, v%d\nv_lshl_add_u32 v%d, v%d, 3, v%d' % (OAD, T + 1, OAD, T + 2, OAD))
    A('v_mov_b32 v%d, 0xf149f2ca' % NEG)
    A.label('L_ab_job')
    A('s_lshl_b32 s52, s%d, 5\ns_add_u32 s52, s52, s%d\ns_lshl_b32 s52, s52, 11' % (S_SEG, S_H))
    A('s_add_u32 s%d, s52, %d' % (S_T0, QB))
    for a_ in range(2):
        A('buffer_load_dwordx4 %s, v%d, %s, s%d offen offset:%d sc1' % (v(QR + 4 * a_, 4), LIN, SRD_WS, S_T0, 1024 * a_))
    for base, reg in ((KB, KR), (VB, VR)):
        for i in range(9):
            A('s_add_u32 s%d, s52, %d\ns_cmp_ge_u32 s%d, %d\ns_cselect_b32 s%d, s%d, %d' % (S_T0, base - (8 - i) * 65536, S_SEG, 8 - i, S_T0, S_T0, OOB))
            for a_ in range(2):
                A('buffer_load_dwordx4 %s, v%d, %s, s%d offen offset:%d sc1' % (r(reg + 8 * i + 4 * a_, 4), LIN, SRD_WS, S_T0, 1024 * a_))
    for i in range(9):
        for a_ in range(2):
            A('v_mfma_f32_32x32x16_bf16 %s, %s, %s, %s' % (v(S + 16 * i, 16), r(KR + 8 * i + 4 * a_, 4), v(QR + 4 * a_, 4), v(S + 16 * i, 16) if a_ else '0'))
    for rr in range(16):
        c = 8 * (rr >> 2) + (rr & 3)
        A('v_cmp_ge_i32 vcc, v%d, %d' % (THR, c) if False else 'v_cmp_le_i32 vcc, %d, v%d' % (c, THR))
        A('v_cndmask_b32 v%d, v%d, v%d, vcc' % (S + rr, S + rr, NEG))
        A('v_cndmask_b32 v%d, v%d, v%d, vcc' % (S + 128 + rr, NEG, S + 128 + rr))
    A('s_cmp_ge_u32 s%d, 8\ns_cbranch_scc1 L_ab_full' % S_SEG)
    for i in range(8):
        A('s_cmp_ge_u32 s%d, %d\ns_cbranch_scc1 L_ab_full' % (S_SEG, 8 - i))
        for rr in range(16):
            A('v_mov_b32 v%d, v%d' % (S + 16 * i + rr, NEG))
    A.label('L_ab_full', keep=True)
    M = T
    A('v_max3_f32 v%d, v%d, v%d, v%d' % (M, S, S + 1, S + 2))
    A('v_max3_f32 v%d, v%d, v%d, v%d' % (M + 1, S + 3, S + 4, S + 5))
    for i in range(6, 144, 2):
        d = M + ((i >> 1) & 1)
        A('v_max3_f32 v%d, v%d, v%d, v%d' % (d, d, S + i, S + i + 1))
    A('v_max_f32 v%d, v%d, v%d\nv_max_f32 v%d, v%d, v%d' % (M + 2, M, M + 1, M + 3, M, M + 1))
    A('v_permlane32_swap_b32 v%d, v%d' % (M + 2, M + 3))
    A('v_max_f32 v%d, v%d, v%d\nv_mul_f32 v%d, s%d, v%d' % (M, M + 2, M + 3, M, S_C, M))
    for i in range(9):
        b = S + 16 * i
        for rr in range(16):
            A('v_fma_f32 v%d, v%d, s%d, -v%d' % (b + rr, b + rr, S_C, M))
        for rr in range(16):
            A('v_exp_f32 v%d, v%d' % (b + rr, b + rr))
        for a_ in range(2):
            for hq, q in enumerate((a_, a_ + 2)):
                d = b + 4 * a_ + 2 * hq
                A('v_cvt_pk_bf16_f32 v%d, v%d, v%d\nv_cvt_pk_bf16_f32 v%d, v%d, v%d' % (d, b + 4 * q, b + 4 * q + 1, d + 1, b + 4 * q + 2, b + 4 * q + 3))
        for a_ in range(2):
            A('v_mfma_f32_32x32x16_bf16 %s, %s, %s, %s' % (v(O, 16), r(VR + 8 * i + 4 * a_, 4), v(b + 4 * a_, 4), v(O, 16) if (i or a_) else '0'))
    A('s_mul_i32 s%d, s%d, 40960\ns_mul_i32 s%d, s%d, 40\ns_add_u32 s%d, s%d, s%d\ns_add_u32 s%d, s%d, %d' % (S_T0, S_SEG, S_T1, S_H, S_T0, S_T0, S_T1, S_T0, S_T0, OB))
    A('v_rcp_f32 v%d, v%d' % (M, O + 12))
    for i in range(12):
        A('v_mul_f32 v%d, v%d, v%d' % (O + i, O + i, M))
    for q in range(3):
        A('v_cvt_pk_bf16_f32 v%d, v%d, v%d\nv_cvt_pk_bf16_f32 v%d, v%d, v%d' % (T + 4 + 2 * q, O + 4 * q, O + 4 * q + 1, T + 5 + 2 * q, O + 4 * q + 2, O + 4 * q + 3))
    for q in range(3):
        if q == 2:
            A('s_mov_b32 exec_hi, 0')
        A('buffer_store_dwordx2 %s, v%d, %s, s%d offen offset:%d sc1' % (v(T + 4 + 2 * q, 2), OAD, SRD_WS, S_T0, 16 * q))
    A('s_mov_b32 exec_hi, -1')
    A('s_add_u32 s%d, s%d, 1\ns_add_u32 s%d, s%d, 1\ns_cmp_lt_u32 s%d, 8\ns_cbranch_scc1 L_ab_job' % (S_SEG, S_SEG, S_J, S_J, S_J))
```

```python
from asmdsl import *
from layout import *
import math, struct


def f32bits(x):
    return struct.unpack('<I', struct.pack('<f', x))[0]


S_W = 3
SRD_WS = 's[4:7]'
SRD_DBG = 's[16:19]'
S_X, S_H, S_COMM, S_STEP = 20, 21, 22, 23
S_TMO = 32
S_T0, S_T1, S_T2, S_T3 = 33, 34, 35, 36
S_LOCB, S_REMRB, S_LOCWB, S_REMWB = 37, 38, 39, 40
S_LOCR, S_REMR, S_LOCW, S_REMW, S_LOCP, S_REMP = 41, 42, 43, 44, 45, 46
S_PW, S_PP, S_PR, S_PRO = 47, 48, 49, 50
S_PW1, S_PW2, S_PP1, S_PP2 = 51, 52, 53, 54
S_KOFF, S_VOFF, S_MOFF, S_F2, S_F1, S_KNOWN, S_ISRED, S_C = 55, 56, 57, 58, 59, 60, 61, 62
S_REMR2 = 63
S_TCH = 98
S_STAMP = 64
S_STOFF = 96
TMO = 1 << 18

V_LIN, V_WL, V_XW, V_A, V_PART, V_RED, V_IDX, V_Q, V_T, V_K1, V_K2, V_K3 = range(12)
AQ = [12, 16]
AK = [20, 24]
AV = [28, 32]
AX = 36
AO = 56
STG = 64
VV = 88
WBASE = 96

L_MEMO, L_MEMX, L_SELT, L_SELR = 0, 5120, 13312, 14336
L_SC, L_O = L_MEMO, L_MEMX
L_W0, L_WSTR = 16384, 36864

LDS_JOBS = [('v', 0), ('v', 1), ('v', 2), ('v', 3), ('v', 4), ('k', 6), ('k', 8), ('v', 5), ('v', 9)]


class Rec:
    def __init__(self, A, opt):
        self.A = A
        self.opt = opt
        self.loc = {}
        nxt = WBASE
        self.jobs = []
        for cc in range(10):
            for m in 'qkv':
                if (m, cc) in LDS_JOBS:
                    continue
                self.jobs.append((m, cc))
                for t in range(2):
                    self.loc[(m, t, cc)] = ('r', nxt)
                    nxt += 8
        for p in range(2):
            for J in range(2):
                self.jobs.append(('o', p, J))
                for kb in range(2):
                    self.loc[('o', p, 2 * J + kb)] = ('r', nxt)
                    nxt += 8
        self.jobs.append(('s',))
        for k in range(4):
            self.loc[('s', k)] = ('r', nxt)
            nxt += 4
        assert nxt == 512, nxt
        for j in LDS_JOBS:
            slot = len(self.jobs) % 9
            self.jobs.append(j)
            for t in range(2):
                self.loc[(j[0], t, j[1])] = ('l', slot * 4096 + t * 2048)
        assert len(self.jobs) == 35
        self.lops = [(m, t, cc) for (m, cc) in LDS_JOBS for t in range(2)]
        self.hold = set()

    def delay(self, n):
        while n > 0:
            if self.opt.get('warm'):
                self.A('v_mov_b32 v%d, v%d\ns_nop 2' % (VV + 7, VV + 7))
                n -= 4
            else:
                self.A('s_nop %d' % (min(n, 16) - 1))
                n -= 16

    def stamp(self, i):
        st = self.opt.get('stamps')
        if st and (st == 1 or i in st):
            self.A('s_memtime s[%d:%d]' % (S_STAMP + 2 * i, S_STAMP + 2 * i + 1))

    def setup(self, sc):
        A = self.A
        A('s_load_dwordx2 s[8:9], s[0:1], 16\ns_load_dwordx2 s[12:13], s[0:1], 24')
        A('s_load_dwordx2 s[24:25], s[0:1], 32\ns_load_dwordx2 s[28:29], s[0:1], 40')
        A('s_load_dwordx2 s[64:65], s[0:1], 8')
        for b in (10, 14, 26, 30):
            A('s_mov_b32 s%d, 5242880\ns_mov_b32 s%d, 0x20000' % (b, b + 1))
        A('s_mov_b32 s66, 10240\ns_mov_b32 s67, 0x20000')
        L = 95
        G, N = 94, 93
        DA, DB, DC = 92, 91, 90
        TA, TB, TC = 89, 88, 87
        T1, T2, T3 = 86, 85, 84
        A('v_mov_b32 v%d, v0' % L)
        A('v_lshrrev_b32 v%d, 4, v%d\nv_and_b32 v%d, 15, v%d' % (G, L, N, L))
        A('v_lshrrev_b32 v%d, 2, v%d\nv_and_b32 v%d, 3, v%d\nv_lshlrev_b32 v%d, 4, v%d' % (T1, L, T2, L, T2, T2))
        A('v_lshl_add_u32 v%d, v%d, 13, v%d' % (DA, T1, T2))
        A('v_mul_u32_u24 v%d, 1280, v%d\nv_add_u32 v%d, v%d, v%d' % (T1, T1, DB, T1, T2))
        A('v_lshrrev_b32 v%d, 1, v%d\nv_and_b32 v%d, 1, v%d\nv_lshlrev_b32 v%d, 4, v%d' % (T1, L, T2, L, T2, T2))
        A('v_mul_u32_u24 v%d, 1280, v%d\nv_add_u32 v%d, v%d, v%d' % (T1, T1, DC, T1, T2))
        A('s_mul_i32 s%d, s%d, %d\ns_add_u32 s%d, s%d, %d' % (S_T3, S_W, L_WSTR, S_T3, S_T3, L_W0))
        A('s_lshl_b32 s68, s%d, 8\ns_lshl_b32 s%d, s%d, 6\ns_add_u32 s68, s68, s%d' % (S_H, S_T0, S_W, S_T0))
        A('s_mul_i32 s%d, s%d, %d' % (S_T0, S_X, 320 * 8192))
        A('s_add_u32 s69, s68, s%d' % S_T0)
        A('s_sub_u32 s70, %d, s%d\ns_add_u32 s70, s70, s68' % (320 * 8192, S_T0))
        A('s_mul_i32 s71, s%d, %d\ns_mul_i32 s%d, s%d, 640\ns_add_u32 s71, s71, s%d' % (S_H, 128 * 1280, S_T0, S_X, S_T0))
        A('s_mul_i32 s%d, s%d, 160\ns_add_u32 s71, s71, s%d' % (S_T0, S_W, S_T0))
        for k in range(4):
            A('s_xor_b32 s%d, s%d, %d\ns_mul_i32 s%d, s%d, %d\ns_add_u32 s%d, s%d, s71' % (S_T0, S_W, k, S_T0, S_T0, 32 * 1280, 72 + k, S_T0))
        A('s_waitcnt lgkmcnt(0)')

        def issue(j):
            job = self.jobs[j]
            slot = j % 9
            for i in range(4):
                A('s_add_u32 m0, s%d, %d' % (S_T3, slot * 4096 + i * 1024))
                if job[0] in 'qkv':
                    m, cc = job
                    A('s_add_u32 s%d, s%d, %d' % (S_T0, 69 if cc < 5 else 70, ((cc % 5) * 64 + 16 * i) * 8192))
                    srd = {'q': 's[8:11]', 'k': 's[12:15]', 'v': 's[24:27]'}[m]
                    A('buffer_load_dwordx4 v%d, %s, s%d offen lds' % (DA, srd, S_T0))
                elif job[0] == 'o':
                    _, p, J = job
                    A('s_add_u32 s%d, s%d, %d' % (S_T0, 72 + 2 * J + (i >> 1), (i & 1) * 16 * 1280 + p * 64))
                    A('buffer_load_dwordx4 v%d, s[28:31], s%d offen lds' % (DB, S_T0))
                else:
                    A('s_add_u32 s%d, s%d, %d' % (S_T0, 72 + i, 128))
                    A('buffer_load_dwordx4 v%d, s[28:31], s%d offen lds' % (DC, S_T0))
            A.tag('job%d' % j)
        for j in range(9):
            issue(j)
        A('v_lshlrev_b32 v%d, 4, v%d' % (V_LIN, L))
        A('v_add_u32 v%d, s%d, v%d' % (V_WL, S_T3, V_LIN))
        A('s_lshl_b32 s%d, s%d, 10\nv_add_u32 v%d, s%d, v%d' % (S_T0, S_W, V_XW, S_T0, V_LIN))
        for k, vk in ((1, V_K1), (2, V_K2), (3, V_K3)):
            A('v_xor_b32 v%d, %d, v%d' % (vk, k * 1024, V_XW))
        A('v_bfe_u32 v%d, v%d, 2, 1\nv_lshlrev_b32 v%d, 7, v%d\nv_lshl_add_u32 v%d, v%d, 8, v%d' % (T1, N, T1, T1, T1, G, T1))
        A('v_lshrrev_b32 v%d, 3, v%d\nv_lshl_add_u32 v%d, v%d, 6, v%d' % (T2, N, T1, T2, T1))
        A('v_and_b32 v%d, 1, v%d\nv_lshl_add_u32 v%d, v%d, 5, v%d' % (T2, N, T1, T2, T1))
        A('v_bfe_u32 v%d, v%d, 1, 1\nv_lshl_add_u32 v%d, v%d, 4, v%d' % (T2, N, V_A, T2, T1))
        A('v_lshrrev_b32 v%d, 2, v%d\nv_add_u32 v%d, 4096, v%d' % (V_Q, V_XW, V_Q, V_Q))
        A('v_lshlrev_b32 v%d, 3, v%d\nv_lshl_add_u32 v%d, v%d, 12, v%d' % (T1, N, V_PART, G, T1))
        A('v_and_b32 v%d, 7, v%d\nv_lshlrev_b32 v%d, 2, v%d\nv_lshl_add_u32 v%d, v%d, 5, v%d' % (T2, N, T2, T2, V_RED, G, T2))
        A('v_mul_u32_u24 v%d, 1280, v%d\nv_add_u32 v12, v%d, v%d' % (T1, G, T1, T2))
        A('v_lshrrev_b32 v%d, 3, v%d\nv_bfe_u32 v%d, v%d, 1, 1\nv_lshl_add_u32 v%d, v%d, 16, v%d' % (T1, N, T2, N, T1, T2, T1))
        A('s_mov_b32 s%d, 0xaaaa\nv_mul_lo_u32 v%d, v%d, s%d\nv_add_u32 v%d, 0x44444444, v%d' % (S_T0, T1, T1, S_T0, V_IDX, T1))
        A('v_and_b32 v%d, 3, v%d\nv_lshlrev_b32 v%d, 3, v%d\nv_add_u32 v%d, s%d, v%d' % (T3, N, T3, T3, T3, S_T3, T3))
        A('v_lshrrev_b32 v%d, 1, v%d\nv_lshlrev_b32 v%d, 4, v%d' % (T1, G, T1, T1))
        A('v_and_b32 v%d, 1, v%d\nv_lshl_add_u32 v%d, v%d, 2, v%d' % (T2, G, T1, T2, T1))
        A('v_lshrrev_b32 v%d, 3, v%d\nv_lshl_add_u32 v%d, v%d, 3, v%d' % (T2, N, T1, T2, T1))
        A('v_bfe_u32 v%d, v%d, 2, 1\nv_add_u32 v%d, v%d, v%d' % (T2, N, T1, T1, T2))
        A('v_lshl_add_u32 v%d, v%d, 6, v%d' % (TA, T1, T3))
        A('v_and_b32 v%d, 1, v%d\nv_lshlrev_b32 v%d, 4, v%d' % (T1, G, T1, T1))
        A('v_lshrrev_b32 v%d, 1, v%d\nv_lshl_add_u32 v%d, v%d, 2, v%d' % (T2, G, T1, T2, T1))
        A('v_bfe_u32 v%d, v%d, 2, 1\nv_add_u32 v%d, v%d, v%d' % (T2, N, T1, T1, T2))
        A('v_lshl_add_u32 v%d, v%d, 6, v%d' % (TB, T1, T3))
        A('v_lshrrev_b32 v%d, 3, v%d\nv_lshl_add_u32 v%d, v%d, 5, v%d' % (T2, N, TB, T2, TB))
        A('v_lshrrev_b32 v%d, 2, v%d\nv_lshl_add_u32 v%d, v%d, 5, v%d' % (T1, L, TC, T1, T3))
        A('v_and_b32 v%d, 1, v%d\nv_lshlrev_b32 v%d, 2, v%d\nv_sub_u32 v%d, v%d, v%d' % (T1, G, T1, T1, T1, N, T1))
        A('v_and_b32 v%d, 2, v%d\nv_sub_u32 v%d, v%d, v%d' % (T2, G, T1, T1, T2))
        A('v_mov_b32 v20, 0x3f80\nv_mov_b32 v21, 0x3f800000')
        for d, z in enumerate((0, 0, 8, 8)):
            A('v_cmp_eq_u32 vcc, %d, v%d\nv_cndmask_b32 v%d, 0, v20, vcc' % (z, T1, 16 + d))
            A('v_cmp_eq_u32 vcc, %d, v%d\nv_cndmask_b32 v%d, v%d, v21, vcc' % (z + 1, T1, 16 + d, 16 + d))
        A('ds_write_b128 v%d, v[16:19] offset:%d' % (V_LIN, L_SELT))
        A('v_and_b32 v%d, 7, v%d' % (T1, N))
        for par in range(2):
            A('v_cmp_eq_u32 vcc, %d, v%d\nv_cndmask_b32 v%d, 0, v20, vcc' % (par, T1, 24 + par))
            A('v_cmp_eq_u32 vcc, %d, v%d\nv_cndmask_b32 v%d, v%d, v21, vcc' % (4 + par, T1, 24 + par, 24 + par))
        A('v_mov_b32 v26, v24\nv_mov_b32 v27, v25')
        A('ds_write_b128 v%d, v[24:27] offset:%d' % (V_LIN, L_SELR))
        A('s_lshl_b32 s%d, s%d, 5\ns_add_u32 s%d, s%d, s%d' % (S_T0, S_W, S_T0, S_T0, S_H))
        A('s_cmp_lt_u32 s%d, 40\ns_cselect_b32 s%d, 1, 0' % (S_T0, S_ISRED))
        A('s_cselect_b32 s%d, 0, 0x10000000' % S_T2)
        A('s_lshr_b32 s76, s%d, 1\ns_lshl_b32 s76, s76, 5\ns_mul_i32 s%d, s%d, 640\ns_add_u32 s76, s76, s%d' % (S_T0, S_T1, S_X, S_T1))
        A('s_and_b32 s%d, s%d, 1\ns_mul_i32 s%d, s%d, 5120\ns_add_u32 s76, s76, s%d\ns_add_u32 s76, s76, s%d' % (S_T1, S_T0, S_T1, S_T1, S_T1, S_T2))
        A('buffer_load_dword v13, v12, s[64:67], s76 offen')
        A('s_lshl_b32 s%d, s%d, 12' % (S_PR, S_T0))
        A('s_lshl_b32 s%d, s%d, 7\ns_add_u32 s%d, s%d, s%d' % (S_T0, S_T0, S_T0, S_T0, S_T2))
        A('s_lshl_b32 s%d, s%d, 15\ns_add_u32 s%d, s%d, s%d\ns_add_u32 s%d, s%d, %d' % (S_LOCB, S_X, S_LOCB, S_LOCB, S_COMM, S_LOCB, S_LOCB, MLOC))
        A('s_add_u32 s%d, s%d, s%d' % (S_LOCWB, S_LOCB, S_T0))
        A('s_lshl_b32 s%d, s%d, 14\ns_add_u32 s%d, s%d, s%d' % (S_REMW, S_X, S_REMW, S_REMW, S_T0))
        A('s_xor_b32 s%d, s%d, 1\ns_lshl_b32 s%d, s%d, 14' % (S_REMR, S_X, S_REMR, S_REMR))
        A('s_mul_i32 s%d, s%d, %d\ns_add_u32 s%d, s%d, s%d\ns_add_u32 s%d, s%d, %d' % (S_T1, S_X, 2 * PART_STRIDE, S_T1, S_T1, S_COMM, S_T1, S_T1, PART))
        A('s_add_u32 s%d, s%d, s%d\ns_add_u32 s%d, s%d, %d' % (S_PR, S_PR, S_T1, S_PRO, S_PR, PART_STRIDE))
        A('s_mul_i32 s%d, s%d, %d\ns_add_u32 s%d, s%d, s%d' % (S_PW, S_W, 5 * 8192, S_PW, S_PW, S_T1))
        A('s_lshl_b32 s%d, s%d, 7\ns_add_u32 s%d, s%d, s%d\ns_add_u32 s%d, s%d, %d' % (S_T1, S_H, S_PW, S_PW, S_T1, S_PP, S_PW, PART_STRIDE))
        A('s_lshl_b32 s%d, s%d, 13\ns_lshl_b32 s%d, s%d, 11\ns_add_u32 s%d, s%d, s%d' % (S_T0, S_H, S_T1, S_W, S_T0, S_T0, S_T1))
        A('s_add_u32 s%d, s%d, %d\ns_add_u32 s%d, s%d, %d' % (S_KOFF, S_T0, KA, S_VOFF, S_T0, VA))
        A('s_lshl_b32 s%d, s%d, 7\ns_add_u32 s%d, s%d, %d' % (S_T0, S_H, S_F1, S_T0, F1 + 32 * 128))
        A('s_mov_b32 s%d, 0x%x' % (S_C, f32bits(128 ** -0.5 * math.log2(math.e))))
        A('s_mov_b32 s%d, 0\ns_mov_b32 s%d, 0' % (S_STEP, S_KNOWN))
        A('v_mov_b32 v14, -1\nv_mov_b32 v15, -1')
        for base in (S_PW, S_PP):
            for p in range(3):
                A('s_add_u32 s%d, s%d, %d' % (S_T0, base, p * 16384))
                if p == 2:
                    A('s_mov_b32 exec_hi, 0')
                A('buffer_store_dwordx2 v[14:15], v%d, %s, s%d offen%s' % (V_PART, SRD_WS, S_T0, sc))
                if p == 2:
                    A('s_mov_b32 exec_hi, -1')
        for slot in range(1, 4):
            A('s_add_u32 s%d, s%d, %d' % (S_T0, S_LOCWB, slot * 8192))
            A('buffer_store_dword v14, v%d, %s, s%d offen%s' % (V_RED, SRD_WS, S_T0, sc))

        def convert(j):
            job = self.jobs[j]
            so = (j % 9) * 4096
            A.wait_tag('job%d' % j)
            if job[0] in 'qkv':
                m, cc = job
                for t in range(2):
                    kind, at = self.loc[(m, t, cc)]
                    dst = at if kind == 'r' else 32 + 8 * t
                    for Q in range(4):
                        A('ds_read_b64_tr_b16 %s, v%d offset:%d' % (r(dst + 2 * Q, 2), TA, so + (32 * (Q >> 1) + 2 * (Q & 1)) * 64 + 32 * t))
                A('s_waitcnt lgkmcnt(0)')
                if kind == 'l':
                    for i in range(4):
                        A('ds_write_b128 v%d, %s offset:%d' % (V_WL, v(32 + 4 * i, 4), so + i * 1024))
            elif job[0] == 'o':
                _, p, J = job
                for kb in range(2):
                    dst = self.loc[('o', p, 2 * J + kb)][1]
                    for Q in range(4):
                        A('ds_read_b64_tr_b16 %s, v%d offset:%d' % (r(dst + 2 * Q, 2), TB, so + (32 * kb + 8 * (Q >> 1) + 2 * (Q & 1)) * 64))
                A('s_waitcnt lgkmcnt(0)')
            else:
                for k in range(4):
                    dst = self.loc[('s', k)][1]
                    for Q in range(2):
                        A('ds_read_b64_tr_b16 %s, v%d offset:%d' % (r(dst + 2 * Q, 2), TC, so + (32 * k + 16 * Q) * 32))
                A('s_waitcnt lgkmcnt(0)')
        for j in range(35):
            convert(j)
            if j + 9 < 35:
                issue(j + 9)
            if j == 9:
                A('v_min_u32 v13, -2, v13')
                A('buffer_store_dword v13, v%d, %s, s%d offen%s' % (V_RED, SRD_WS, S_LOCWB, sc))
                A('buffer_store_dword v13, v%d, %s, s%d offen sc1' % (V_RED, SRD_WS, S_REMW))
                A('s_add_u32 s%d, s%d, 8192' % (S_T0, S_REMW))
                A('buffer_store_dword v13, v%d, %s, s%d offen sc1' % (V_RED, SRD_WS, S_T0))
                A.tag('init')
            if j == 19:
                A.wait_tag('init')
                A('s_barrier')
                A('v_cmp_eq_u32 vcc, 0, v%d\nv_mov_b32 v14, 0x1000\nv_mov_b32 v15, %d\nv_cndmask_b32 v14, v14, v15, vcc' % (V_XW, D_ARR2 if sc else D_ARR))
                A('v_mov_b32 v15, 1')
                A('buffer_atomic_add v15, v14, %s, 0 offen' % SRD_DBG)
        A('s_waitcnt vmcnt(0) lgkmcnt(0)')

    def wop(self, key):
        kind, at = self.loc[key]
        if kind == 'r':
            return r(at, 8)
        i = self.lops.index(key)
        return v(STG + 8 * (i % 3), 8)

    def lread(self, i):
        if i >= len(self.lops) or self.opt.get('nolds'):
            return
        at = self.loc[self.lops[i]][1]
        d = STG + 8 * (i % 3)
        self.A('ds_read_b128 %s, v%d offset:%d' % (v(d, 4), V_WL, at))
        self.A('ds_read_b128 %s, v%d offset:%d' % (v(d + 4, 4), V_WL, at + 1024))

    def proj(self, m, t, cc, areg):
        acc = {'q': AQ, 'k': AK, 'v': AV}[m][t]
        if m in self.opt.get('skip', ''):
            if self.opt.get('skipnop'):
                self.A('s_nop 3')
            return
        self.A('v_smfmac_f32_16x16x64_bf16 %s, %s, %s, v%d' % (v(acc, 4), v(areg, 4), self.wop((m, t, cc)), V_IDX) + ' abid:1')
        if self.loc[(m, t, cc)][0] == 'l':
            i = self.lops.index((m, t, cc))
            if i not in self.hold:
                self.lread(i + 3)

    def chk4(self, base, tmp):
        self.A('v_max3_u32 v%d, v%d, v%d, v%d\nv_max_u32 v%d, v%d, v%d' % (tmp, base, base + 1, base + 2, tmp, tmp, base + 3))

    def loop(self, sc, sfx):
        A = self.A
        opt = self.opt
        lab = lambda n: 'R%s_%s' % (sfx, n)
        tail = []

        def cvt(d, s0, s1=None):
            A('v_cvt_pk_bf16_f32 v%d, v%d, v%d' % (d, s0, s0 + 1 if s1 is None else s1))

        def zero(a):
            A('v_mov_b64 v[%d:%d], 0' % (a, a + 1))

        def ring():
            A('s_and_b32 s%d, s%d, 3\ns_lshl_b32 s%d, s%d, 13\ns_add_u32 s%d, s%d, s%d' % (S_T0, S_STEP, S_T0, S_T0, S_LOCR, S_LOCB, S_T0))
            A('s_add_u32 s%d, s%d, s%d' % (S_LOCW, S_LOCWB, S_T0))
            A('s_xor_b32 s%d, s%d, 16384\ns_add_u32 s%d, s%d, s%d' % (S_T1, S_T0, S_LOCP, S_LOCWB, S_T1))
        PO, PX = AX, VV
        M1 = VV + 6
        for i in range(3):
            self.lread(i)
        for i in range(12, 36, 2):
            zero(i)
        ring()
        A.label(lab('loop'))
        A.assume(lg='v[64:87]')
        A('s_barrier')
        self.stamp(0)
        if opt.get('stamps'):
            A('s_memrealtime s[94:95]')

        def gload(p, so):
            A('buffer_load_dwordx4 %s, v%d, %s, s%d offen sc1' % (v(p, 4), V_XW, SRD_WS, so))
            A('buffer_load_dword v%d, v%d, %s, s%d offen sc1' % (p + 4, V_Q, SRD_WS, so))

        def gmax(p):
            return ['v_max3_u32 v%d, v%d, v%d, v%d' % (p + 5, p, p + 1, p + 2), 'v_max3_u32 v%d, v%d, v%d, v%d' % (p + 5, p + 5, p + 3, p + 4),
                    'v_cmp_eq_u32 vcc, -1, v%d' % (p + 5)]

        def gwrite(p, off):
            return ['ds_write_b128 v%d, %s offset:%d' % (V_XW, v(p, 4), off), 'ds_write_b32 v%d, v%d offset:%d' % (V_Q, p + 4, off)]
        depth = opt.get('odepth', 1)
        A('s_mov_b32 s%d, %d' % (S_TMO, TMO))
        self.delay(opt.get('odelay', 0))
        A.auto = False
        for _ in range(depth - 1):
            gload(PO, S_LOCR)
            self.delay(opt.get('ogap', 16))
        if opt.get('xwith'):
            gload(PO, S_LOCR)
            gload(PX, S_REMR)
            self.delay(opt.get('ofill', 0))
            A('s_waitcnt vmcnt(2)')
            A('\n'.join(gmax(PO)))
            A('\n'.join(gwrite(PO, L_MEMO)))
            A('s_cbranch_vccz %s' % lab('og'))
        A.label(lab('op'))
        gload(PO, S_LOCR)
        A('s_sub_u32 s%d, s%d, 1\ns_cbranch_scc1 L_abort' % (S_TMO, S_TMO))
        if opt.get('stamps'):
            A('s_add_u32 s97, s97, 0x400')
        if not opt.get('xwith'):
            self.delay(opt.get('ofill', 0))
        A('s_waitcnt vmcnt(%d)' % (2 * (depth - 1)))
        A('\n'.join(gmax(PO)))
        A('\n'.join(gwrite(PO, L_MEMO)))
        A('s_cbranch_vccnz %s' % lab('og' if opt.get('free') else 'op'))
        A.label(lab('og'))
        A.auto = True
        A.vm = [regs_of(v(PO, 5))]
        A.lg = []
        gload(PX, S_REMR)
        self.stamp(1)
        A('s_waitcnt lgkmcnt(0)\ns_barrier')
        A('ds_read_b128 %s, v%d offset:%d' % (v(AO, 4), V_A, L_MEMO))
        A('ds_read_b128 %s, v%d offset:%d' % (v(AO + 4, 4), V_A, L_MEMO + 1024))
        A('v_mov_b32 v%d, %s\nv_mov_b32 v%d, %s' % (M1, '0x3c003c00' if opt.get('free') else '-1', M1 + 1, '0x3c003c00' if opt.get('free') else '-1'))
        A('s_add_u32 s%d, s%d, 16384\ns_add_u32 s%d, s%d, 32768' % (S_PP1, S_PP, S_PP2, S_PP))
        self.stamp(2)
        side = {}
        pois = ['buffer_store_dwordx2 %s, v%d, %s, s%d offen%s' % (v(M1, 2), V_PART, SRD_WS, S_PP, sc),
                'buffer_store_dwordx2 %s, v%d, %s, s%d offen%s' % (v(M1, 2), V_PART, SRD_WS, S_PP1, sc),
                's_mov_b32 exec_hi, 0\nbuffer_store_dwordx2 %s, v%d, %s, s%d offen%s\ns_mov_b32 exec_hi, -1' % (v(M1, 2), V_PART, SRD_WS, S_PP2, sc),
                'buffer_store_dword v%d, v%d, %s, s%d offen%s' % (M1, V_RED, SRD_WS, S_LOCP, sc)]
        for k, it in zip((0, 2, 3, 6), pois):
            side[k] = [it]
        xs = opt.get('xslot', 14)
        g = gmax(PX)
        w = gwrite(PX, L_MEMX)
        side.setdefault(xs, []).append(g[0])
        side.setdefault(xs + 1, []).append(g[1])
        side.setdefault(xs + 2, []).append(g[2])
        side.setdefault(xs + 3, []).append(w[0])
        side.setdefault(xs + 4, []).extend([w[1], 'BR'])
        xb = max(xs + 4 + opt.get('xlag', 5), 20)
        side.setdefault(xb, []).append('BAR')
        for c in range(5):
            side.setdefault(xb + (0, 1, 3, 6, 9)[c], []).append('ds_read_b128 %s, v%d offset:%d' % (v(AX + 4 * c, 4), V_A, L_MEMX + 1024 * c))
        kv = ['buffer_load_dwordx4 %s, v%d, %s, s%d offen sc1' % (v(AO, 4), V_LIN, SRD_WS, S_KOFF),
              'buffer_load_dwordx4 %s, v%d, %s, s%d offen offset:1024 sc1' % (v(AO + 4, 4), V_LIN, SRD_WS, S_KOFF),
              'buffer_load_dwordx4 %s, v%d, %s, s%d offen sc1' % (v(VV, 4), V_LIN, SRD_WS, S_VOFF),
              'buffer_load_dwordx4 %s, v%d, %s, s%d offen offset:1024 sc1' % (v(VV + 4, 4), V_LIN, SRD_WS, S_VOFF),
              'v_bfe_u32 v%d, v%d, 8, 1\ns_add_u32 s%d, s%d, %d' % (V_T, V_LIN, S_KOFF, S_KOFF, 32 * 8192),
              'v_mul_u32_u24 v%d, 0x%x, v%d\ns_add_u32 s%d, s%d, %d' % (V_T, VA - KA - 2048, V_T, S_VOFF, S_VOFF, 32 * 8192),
              'v_lshl_add_u32 v%d, v%d, 3, v%d' % (V_T, V_LIN, V_T),
              's_mov_b32 exec_hi, 0\nbuffer_load_dword v%d, v%d, %s, s%d offen sc1\ns_mov_b32 exec_hi, -1' % (V_T, V_T, SRD_WS, S_KOFF)]
        for k, it in zip((30, 31, 33, 34, 36, 38, 39, 42), kv):
            side.setdefault(k, []).append(it)
        SELT = STG + 8 * (13 % 3)
        self.hold = {13}
        side.setdefault(45, []).append('ds_read_b128 %s, v%d offset:%d' % (v(SELT, 4), V_LIN, L_SELT))
        seq = []
        for cc in range(5):
            seq += [(m, t, cc, AO + 4 * (cc & 1)) for m, t in (('q', 0), ('v', 0), ('k', 0), ('q', 1), ('v', 1), ('k', 1))]
            if cc + 2 < 5:
                side.setdefault(len(seq) - 1, []).insert(0, 'ds_read_b128 %s, v%d offset:%d' % (v(AO + 4 * (cc & 1), 4), V_A, L_MEMO + 1024 * (cc + 2)))
        for c in range(5):
            seq += [(m, t, 5 + c, AX + 4 * c) for m, t in (('q', 0), ('k', 0), ('q', 1), ('k', 1))]
        for k, (m, t, cc, ar) in enumerate(seq):
            if k == 30:
                self.stamp(4)
            self.proj(m, t, cc, ar)
            for it in side.pop(k, []):
                if it == 'BR':
                    A.lg[-1][0].add(('tag', 'xw'))
                    A('s_cbranch_vccnz %s' % lab('xb' if opt.get('free') else 'xr'))
                    A.label(lab('xb'), keep=True)
                    self.stamp(3)
                elif it == 'BAR':
                    n = [len(A.lg) - 1 - i for i, (d, sm) in enumerate(A.lg) if ('tag', 'xw') in d or ('v', AO) in d]
                    if n:
                        young = A.lg[len(A.lg) - min(n):]
                        A('s_waitcnt lgkmcnt(%d)' % sum(1 for _, sm in young if not sm))
                        A.lg = [e for e in A.lg if e[1] or any(e is y for y in young)]
                    A('s_barrier')
                else:
                    A(it)
        assert not side, side
        A.vm[-1].clear()

        def retry():
            A.label(lab('xr'))
            A('s_mov_b32 s%d, %d' % (S_TMO, TMO))
            A.label(lab('xl'))
            gload(PX, S_REMR)
            A('s_sub_u32 s%d, s%d, 1\ns_cbranch_scc1 L_abort' % (S_TMO, S_TMO))
            if opt.get('stamps'):
                A('s_add_u32 s97, s97, 1')
            A('s_waitcnt vmcnt(0)')
            A('\n'.join(gmax(PX)))
            A('\n'.join(gwrite(PX, L_MEMX)))
            A('s_cbranch_vccnz %s' % lab('xl'))
            A('s_waitcnt lgkmcnt(0)\ns_branch %s' % lab('xb'))
        tail.append(retry)
        vq = [(t, c) for c in range(5) for t in range(2)]

        def vprj(n=1):
            for _ in range(n):
                if vq:
                    t, c = vq.pop(0)
                    self.proj('v', t, 5 + c, AX + 4 * c)
        self.stamp(5)
        X = AK[0]
        for t in range(2):
            cvt(AQ[t], AQ[t]); cvt(AQ[t] + 1, AQ[t] + 2); cvt(AQ[t] + 2, AK[t]); cvt(AQ[t] + 3, AK[t] + 2)
            A('v_mfma_f32_16x16x32_bf16 %s, %s, %s, 0' % (v(AK[t], 4), v(AQ[t], 4), v(SELT, 4)))
        self.hold = {13, 14}
        vprj()
        cvt(X, AK[0]); cvt(X + 1, AK[0] + 2)
        cvt(X + 2, AK[1]); cvt(X + 3, AK[1] + 2)
        D0, D1, DM = AQ[0], AQ[1], AK[1]
        self.lread(16)
        A('v_mfma_f32_16x16x32_bf16 %s, %s, %s, 0' % (v(DM, 4), v(X, 4), v(X, 4)))
        self.lread(17)
        A('v_mfma_f32_16x16x32_bf16 %s, %s, %s, 0' % (v(D0, 4), v(AO, 4), v(X, 4)))
        A('v_mfma_f32_16x16x32_bf16 %s, %s, %s, 0' % (v(D1, 4), v(AO + 4, 4), v(X, 4)))
        A('v_permlane32_swap_b32 v%d, v%d\nv_permlane32_swap_b32 v%d, v%d' % (DM, DM + 2, DM + 1, DM + 3))
        SM = DM + 2
        RA = AX
        vprj()
        A('v_mov_b32_dpp v%d, v%d row_ror:8 row_mask:0xf bank_mask:0xc' % (SM, DM + 3))
        for i in range(4):
            A('v_mov_b32_dpp v%d, v%d row_ror:8 row_mask:0xf bank_mask:0xc' % (D0 + i, D1 + i))
        A('ds_write_b128 v%d, %s offset:%d' % (V_XW, v(D0, 4), L_SC))
        A('ds_write_b32 v%d, v%d offset:%d' % (V_Q, SM, L_SC))
        self.stamp(6)
        for k in range(3):
            vprj()
            A('v_xor_b32 v%d, %d, v%d' % (RA + k, 256 * (k + 1), V_Q))
        vprj(opt.get('v1', 1))
        A('s_waitcnt lgkmcnt(0)\ns_barrier')
        R = [AQ[1], AK[0], AO]
        RM = AO + 4
        for k, vk in enumerate((V_K1, V_K2, V_K3)):
            A('ds_read_b128 %s, v%d offset:%d' % (v(R[k], 4), vk, L_SC))
            A('ds_read_b32 v%d, v%d offset:%d' % (RM + k, RA + k, L_SC))
            if k > 0:
                vprj()
        vprj(10)
        self.stamp(7)
        for k in range(3):
            A('v_pk_add_f32 %s, %s, %s' % (v(D0, 2), v(D0, 2), v(R[k], 2)))
            A('v_pk_add_f32 %s, %s, %s' % (v(D0 + 2, 2), v(D0 + 2, 2), v(R[k] + 2, 2)))
            A('v_add_f32 v%d, v%d, v%d' % (SM, SM, RM + k))
        S5 = [D0, D0 + 1, D0 + 2, D0 + 3, SM]
        m1, m2, m3 = AQ[1], AQ[1] + 1, AQ[1] + 2
        HALF, ONES = STG, STG + 2
        PZ = AX + 12
        PT, PM = AK[0], PZ + 2
        A('v_max3_f32 v%d, v%d, v%d, v%d' % (m1, S5[0], S5[1], S5[2]))
        A('v_max3_f32 v%d, v%d, v%d, v%d' % (m1, m1, S5[3], S5[4]))
        cvt(AV[0], AV[0]); cvt(AV[0] + 1, AV[0] + 2)
        A('v_max_f32_dpp v%d, v%d, v%d row_ror:8 row_mask:0xf bank_mask:0xf' % (m2, m1, m1))
        A('v_max_f32_dpp v%d, v%d, v%d row_ror:8 row_mask:0xf bank_mask:0xf' % (m3, m1, m1))
        cvt(AV[0] + 2, AV[1]); cvt(AV[0] + 3, AV[1] + 2)
        A('v_permlane16_swap_b32 v%d, v%d' % (m2, m3))
        A('v_max_f32 v%d, v%d, v%d\nv_max_f32 v%d, v%d, v%d' % (m1, m2, m3, m3, m2, m3))
        zero(PZ); zero(PZ + 4)
        A('v_permlane32_swap_b32 v%d, v%d' % (m1, m3))
        A('v_max_f32 v%d, v%d, v%d' % (m1, m1, m3))
        A('v_mul_f32 v%d, s%d, v%d' % (m1, S_C, m1))
        for x in S5:
            A('v_fma_f32 v%d, v%d, s%d, -v%d' % (x, x, S_C, m1))
        for x in S5[:4]:
            A('v_exp_f32 v%d, v%d' % (x, x))
        cvt(PT, D0)
        A('v_exp_f32 v%d, v%d' % (SM, SM))
        cvt(PT + 1, D0 + 2)
        A('v_mov_b32_dpp v%d, v%d row_ror:8 row_mask:0xf bank_mask:0xf' % (PT + 2, PT))
        A('v_mov_b32_dpp v%d, v%d row_ror:8 row_mask:0xf bank_mask:0xf' % (SM + 1, SM))
        A('v_mov_b32_dpp v%d, v%d row_ror:8 row_mask:0xf bank_mask:0xf' % (PT + 3, PT + 1))
        cvt(PM, SM); cvt(PM + 1, SM)
        self.stamp(8)
        O0, O1, SUM = AX, AX + 4, AX + 8
        W0, W1, WS_ = AQ[0], AQ[1], AO
        OA_ = [STG + 8, STG + 12, STG + 16, STG + 20]
        AD = AO + 4
        A('v_mfma_f32_16x16x32_bf16 %s, %s, %s, 0' % (v(O0, 4), v(VV, 4), v(PT, 4)))
        A('v_mov_b32 v%d, 0x3f803f80\nv_mov_b32 v%d, 0x3f803f80' % (ONES, ONES + 1))
        A('v_mfma_f32_16x16x32_bf16 %s, %s, %s, %s' % (v(O0, 4), v(AV[0], 4), v(PZ + 2, 4), v(O0, 4)))
        A('v_mov_b64 v[%d:%d], v[%d:%d]\nv_mov_b32 v%d, 0x3f003f00' % (ONES + 2, ONES + 3, ONES, ONES + 1, HALF))
        A('v_mfma_f32_16x16x32_bf16 %s, %s, %s, 0' % (v(O1, 4), v(VV + 4, 4), v(PT, 4)))
        A('v_mov_b32 v%d, 0x3f003f00' % (HALF + 1))
        zero(W0)
        A('v_mfma_f32_16x16x32_bf16 %s, %s, %s, %s' % (v(O1, 4), v(AV[0], 4), v(PZ, 4), v(O1, 4)))
        cvt(OA_[0], O0); cvt(OA_[0] + 1, O0 + 2)
        A('v_mfma_f32_16x16x32_bf16 %s, %s, %s, 0' % (v(SUM, 4), v(PT, 4), v(ONES, 4)))
        zero(W0 + 2); zero(W1); zero(W1 + 2)
        cvt(OA_[0] + 2, O1); cvt(OA_[0] + 3, O1 + 2)
        A('ds_write_b128 v%d, %s offset:%d' % (V_XW, v(OA_[0], 4), L_O))
        self.stamp(9)
        A('v_mfma_f32_16x16x32_bf16 %s, %s, %s, %s' % (v(SUM, 4), v(PZ + 2, 4), v(HALF, 4), v(SUM, 4)))
        for i in range(4):
            A('v_mov_b32_dpp v%d, v%d row_ror:8 row_mask:0xf bank_mask:0xc' % (OA_[0] + i, OA_[0] + i))
        for k, vk in enumerate((V_K1, V_K2, V_K3)):
            A('v_and_b32 v%d, 0xffffff7f, v%d' % (AD + k, vk))

        def wo(which, k):
            if which < 2:
                A('v_smfmac_f32_16x16x64_bf16 %s, %s, %s, v%d' % (v((W0, W1)[which], 4), v(OA_[k], 4), r(self.loc[('o', which, k)][1], 8), V_IDX))
            else:
                A('v_mfma_f32_16x16x32_bf16 %s, %s, %s, %s' % (v(WS_, 4), v(OA_[k], 4), r(self.loc[('s', k)][1], 4), v(WS_, 4) if k else '0'))
        wo(0, 0)
        A('v_rcp_f32 v%d, v%d' % (SUM, SUM))
        A('s_add_u32 s%d, s%d, 16384\ns_add_u32 s%d, s%d, 32768' % (S_PW1, S_PW, S_PW2, S_PW))
        A('v_rcp_f32 v%d, v%d' % (SUM + 1, SUM + 1))
        A('s_waitcnt lgkmcnt(0)\ns_barrier')
        for k in range(3):
            A('ds_read_b128 %s, v%d offset:%d' % (v(OA_[k + 1], 4), AD + k, L_O))
        SELR = VV
        RD = VV + 4
        wo(1, 0)
        A('v_rcp_f32 v%d, v%d' % (SUM + 2, SUM + 2))
        wo(2, 0)
        A('v_rcp_f32 v%d, v%d' % (SUM + 3, SUM + 3))
        zero(AK[0]); zero(AK[0] + 2)
        self.stamp(10)

        def mul(acc, i):
            A('v_pk_mul_f32 %s, %s, %s' % (v(acc + i, 2), v(acc + i, 2), v(SUM + i, 2)))

        def pst(acc, so):
            A('buffer_store_dwordx2 %s, v%d, %s, s%d offen%s' % (v(acc, 2), V_PART, SRD_WS, so, sc))
        wo(0, 1); wo(0, 2); wo(0, 3)
        A('ds_read_b128 %s, v%d offset:%d' % (v(SELR, 4), V_LIN, L_SELR))
        wo(1, 1); wo(1, 2)
        mul(W0, 0)
        wo(1, 3)
        mul(W0, 2)
        wo(2, 1)
        cvt(W0, W0); cvt(W0 + 1, W0 + 2)
        wo(2, 2)
        pst(W0, S_PW)
        mul(W1, 0)
        wo(2, 3)
        mul(W1, 2)
        cvt(W1, W1); cvt(W1 + 1, W1 + 2)
        pst(W1, S_PW1)
        zero(RD); zero(AK[1]); zero(AK[1] + 2)
        A('s_mov_b32 exec_hi, 0')
        mul(WS_, 0); mul(WS_, 2)
        cvt(WS_, WS_); cvt(WS_ + 1, WS_ + 2)
        pst(WS_, S_PW2)
        A('s_mov_b32 exec_hi, -1')
        self.stamp(11)

        def book1():
            A('s_add_u32 s%d, s%d, 1' % (S_STEP, S_STEP))
            for i in range(3):
                self.lread(i)
            A('s_add_u32 s%d, s%d, %d\ns_add_u32 s%d, s%d, 32768' % (S_REMR, S_REMR, 0 if opt.get('free') else 32768, S_REMW, S_REMW))
            ring()
            if opt.get('free'):
                A('s_mov_b32 s%d, s%d' % (S_LOCR, S_REMR))
            A('s_mov_b32 s%d, s%d\ns_mov_b32 s%d, s%d\ns_mov_b32 s%d, s%d' % (S_T0, S_PW, S_PW, S_PP, S_PP, S_T0))

        def book2():
            for a_ in (AQ[0], AQ[1], AV[0], AV[1]):
                zero(a_); zero(a_ + 2)
            if opt.get('stamps'):
                A('s_waitcnt lgkmcnt(0)')
                A('s_mov_b32 s%d, s97' % (S_STAMP + 28))
                for i in range(16):
                    A('v_writelane_b32 v%d, s%d, %d' % (AO + 7, S_STAMP + 2 * i, i))
                A('v_lshrrev_b32 v%d, 2, v%d' % (AO + 6, V_LIN))

        def stamp_out():
            if opt.get('stamps'):
                A('s_mov_b64 exec, 0xffff')
                A('buffer_store_dword v%d, v%d, %s, s%d offen' % (AO + 7, AO + 6, SRD_WS, S_STOFF))
                A('s_mov_b64 exec, -1')
                A('s_add_u32 s%d, s%d, 64' % (S_STOFF, S_STOFF))
        Y = AO + 4

        def rload():
            for i in range(4):
                A('buffer_load_dwordx4 %s, v%d, %s, s%d offen offset:%d sc1' % (v(AX + 4 * i, 4), V_LIN, SRD_WS, S_PR, 1024 * i))

        def rsum(n0, n1):
            A('s_waitcnt vmcnt(%d)' % n0)
            A('v_smfmac_f32_16x16x64_bf16 %s, %s, %s, v%d' % (v(RD, 4), v(SELR, 4), v(AX, 8), V_IDX))
            A('s_waitcnt vmcnt(%d)' % n1)
            A('v_smfmac_f32_16x16x64_bf16 %s, %s, %s, v%d' % (v(RD, 4), v(SELR, 4), v(AX + 8, 8), V_IDX))
            A('v_add_f32_dpp v%d, v%d, v%d row_ror:8 row_mask:0xf bank_mask:0xf' % (Y, RD, RD))
            A('v_add_f32_dpp v%d, v%d, v%d row_ror:8 row_mask:0xf bank_mask:0xf' % (Y + 1, RD + 1, RD + 1))
        book1()
        A('s_cmp_eq_u32 s%d, 0\ns_cbranch_scc1 %s' % (S_ISRED, lab('nored')))
        depth = opt.get('rdepth', 1)
        self.delay(opt.get('rdelay', 0))
        A.auto = False
        rload()
        book2()
        for k in range(depth - 1):
            self.delay(opt.get('rgap', 0))
            rload()
        A('s_mov_b32 s%d, 64' % S_TMO)
        A('s_waitcnt lgkmcnt(0)')
        A.label(lab('rp'))
        rsum(4 * (depth - 1) + 2, 4 * (depth - 1))
        if opt.get('cmpx', 1):
            cvt(RD + 2, Y)
            A('v_cmpx_o_f32 vcc, v%d, v%d' % (Y, Y + 1))
            A('buffer_store_dword v%d, v%d, %s, s%d offen%s' % (RD + 2, V_RED, SRD_WS, S_LOCW, sc))
            A('s_mov_b64 exec, -1')
            A('s_cmp_eq_u64 vcc, -1\ns_cbranch_scc0 %s' % lab('rg' if opt.get('free') else 'ragain'))
        else:
            A('v_cmp_u_f32 vcc, v%d, v%d' % (Y, Y + 1))
            cvt(RD + 2, Y)
            A('s_cbranch_vccnz %s' % lab('ragain'))
            A('buffer_store_dword v%d, v%d, %s, s%d offen%s' % (RD + 2, V_RED, SRD_WS, S_LOCW, sc))
        A.label(lab('rg'))
        A('buffer_store_dword v%d, v%d, %s, s%d offen sc1' % (RD + 2, V_RED, SRD_WS, S_REMW))
        self.stamp(12)
        A('s_mov_b32 s%d, s%d\ns_mov_b32 s%d, s%d\ns_mov_b32 s%d, s%d' % (S_T0, S_PR, S_PR, S_PRO, S_PRO, S_T0))
        stamp_out()
        A.label(lab('join'))
        A('s_cmp_lt_u32 s%d, %d\ns_cbranch_scc1 %s' % (S_STEP, opt.get('last', 63), lab('loop')))
        A.mark(6)
        A('s_endpgm')
        A.label(lab('ragain'))
        rload()
        zero(RD)
        if opt.get('stamps'):
            A('s_add_u32 s97, s97, 0x100000')
        A('s_sub_u32 s%d, s%d, 1\ns_cbranch_scc0 %s' % (S_TMO, S_TMO, lab('rp')))
        A('s_mov_b32 s%d, %d' % (S_TMO, TMO))
        A.label(lab('rsl'))
        rload()
        A('s_sub_u32 s%d, s%d, 1\ns_cbranch_scc1 L_abort' % (S_TMO, S_TMO))
        A('s_waitcnt vmcnt(0)')
        A('v_max3_u32 v%d, v%d, v%d, v%d' % (Y, AX, AX + 1, AX + 2))
        for i in range(3, 15, 2):
            A('v_max3_u32 v%d, v%d, v%d, v%d' % (Y, Y, AX + i, AX + i + 1))
        A('v_max_u32 v%d, v%d, v%d' % (Y, Y, AX + 15))
        A('v_cmp_eq_u32 vcc, -1, v%d' % Y)
        A('s_cbranch_vccnz %s' % lab('rsl'))
        rsum(0, 0)
        cvt(RD + 2, Y)
        A('buffer_store_dword v%d, v%d, %s, s%d offen%s' % (RD + 2, V_RED, SRD_WS, S_LOCW, sc))
        A('s_branch %s' % lab('rg'))
        A.auto = True
        A.label(lab('nored'))
        book2()
        stamp_out()
        A('s_waitcnt lgkmcnt(0)')
        A('s_cmp_eq_u32 s%d, 3\ns_cbranch_scc0 %s' % (S_W, lab('join')))
        self.kv_ready(lab, 'a', 1)
        A('s_branch %s' % lab('join'))
        for f in tail:
            f()

    def kv_ready(self, lab, sfx, ahead):
        A = self.A
        T = AO
        A('s_add_u32 s%d, s%d, %d\ns_min_u32 s%d, s%d, 63' % (S_T2, S_STEP, ahead, S_T2, S_T2))
        if not self.opt.get('noflags'):
            A('s_cmp_lt_u32 s%d, s%d\ns_cbranch_scc1 %s' % (S_T2, S_KNOWN, lab('kv_ok' + sfx)))
            A('s_mov_b32 s%d, %d' % (S_TMO, TMO))
            A('v_and_b32 v%d, 16, v%d\nv_lshlrev_b32 v%d, 8, v%d' % (T, V_LIN, T, T))
            A.label(lab('kv_p' + sfx))
            A('buffer_load_dword v%d, v%d, %s, s%d offen sc1' % (T + 1, T, SRD_WS, S_F1))
            A('s_sub_u32 s%d, s%d, 1\ns_cbranch_scc1 L_abort' % (S_TMO, S_TMO))
            A('s_waitcnt vmcnt(0)')
            A('v_readlane_b32 s%d, v%d, 0\nv_readlane_b32 s%d, v%d, 1' % (S_T0, T + 1, S_T1, T + 1))
            A('s_nop 1\ns_min_u32 s%d, s%d, s%d' % (S_KNOWN, S_T0, S_T1))
            A('s_cmp_lt_u32 s%d, s%d\ns_cbranch_scc0 %s' % (S_T2, S_KNOWN, lab('kv_p' + sfx)))
            A.label(lab('kv_ok' + sfx))
```

```python
from asmdsl import *
from layout import *
from gen_rec import S_W, SRD_WS, SRD_DBG, S_TMO, S_T0, S_T1, S_T2, S_T3, TMO, f32bits
from gen_bulk import lane_id, srd, OOB, S_R
import math


def job_loader(A, njobs, nslots, s_lds, issue, convert):
    for j in range(min(nslots, njobs)):
        issue(j, j % nslots)
    for j in range(njobs):
        A.wait_tag('job%d' % j)
        convert(j, j % nslots)
        A('s_waitcnt lgkmcnt(0)')
        if j + nslots < njobs:
            issue(j + nslots, j % nslots)


def role_t(A, check, opt):
    LIN, XW, Q4, VA_, IDX, OAD, VR2, T = 0, 1, 2, 3, 4, 5, 6, 7
    QC, VC, QN, VN, KR = 12, 28, 44, 60, 76
    ACC = 108
    G = 124
    AB = 136
    S0, S1, SM = 144, 148, 152
    VM_ = 156
    SEL, HALF, PZ, PT, SUM = 164, 170, 176, 182, 186
    ONES = HALF + 2
    WB = 192
    S_LW, S_WO, S_QO, S_KO, S_VO, S_OO, S_MR, S_MR2, S_F1, S_F3, S_KN, S_S, S_C, S_U = range(37, 51)
    MASK = 52
    L_M, L_K, L_V = 0, 10240, 14336
    loc = {}
    nx = WB
    jobs = [(m, c) for c in range(10) for m in 'kv']
    for m, c in jobs:
        for t in range(2):
            loc[(m, t, c)] = nx
            nx += 8
    assert nx == 512
    srd(A, 8, 24, 5242880)
    srd(A, 12, 32, 5242880)
    L, GG, N, DA, TA = 20, 21, 22, 23, 24
    T1, T2, T3 = T, T + 1, T + 2
    lane_id(A, L)
    A('v_lshrrev_b32 v%d, 4, v%d\nv_and_b32 v%d, 15, v%d' % (GG, L, N, L))
    A('v_lshrrev_b32 v%d, 2, v%d\nv_and_b32 v%d, 3, v%d\nv_lshlrev_b32 v%d, 4, v%d' % (T1, L, T2, L, T2, T2))
    A('v_lshl_add_u32 v%d, v%d, 13, v%d' % (DA, T1, T2))
    A('s_mul_i32 s%d, s%d, 40960' % (S_LW, S_W))
    A('s_lshl_b32 s%d, s%d, 8\ns_lshl_b32 s%d, s%d, 6\ns_add_u32 s%d, s%d, s%d' % (S_WO, S_R, S_T0, S_W, S_WO, S_WO, S_T0))
    A('v_and_b32 v%d, 3, v%d\nv_lshlrev_b32 v%d, 3, v%d\nv_add_u32 v%d, s%d, v%d' % (T3, N, T3, T3, T3, S_LW, T3))
    A('v_lshrrev_b32 v%d, 1, v%d\nv_lshlrev_b32 v%d, 4, v%d' % (T1, GG, T1, T1))
    A('v_and_b32 v%d, 1, v%d\nv_lshl_add_u32 v%d, v%d, 2, v%d' % (T2, GG, T1, T2, T1))
    A('v_lshrrev_b32 v%d, 3, v%d\nv_lshl_add_u32 v%d, v%d, 3, v%d' % (T2, N, T1, T2, T1))
    A('v_bfe_u32 v%d, v%d, 2, 1\nv_add_u32 v%d, v%d, v%d' % (T2, N, T1, T1, T2))
    A('v_lshl_add_u32 v%d, v%d, 6, v%d' % (TA, T1, T3))
    A('s_waitcnt lgkmcnt(0)\ns_barrier')

    def issue(j, slot):
        m, c = jobs[j]
        for i in range(4):
            A('s_add_u32 m0, s%d, %d\ns_add_u32 s%d, s%d, %d' % (S_LW, slot * 4096 + i * 1024, S_T0, S_WO, (c * 64 + 16 * i) * 8192))
            A('buffer_load_dwordx4 v%d, %s, s%d offen lds' % (DA, 's[8:11]' if m == 'k' else 's[12:15]', S_T0))
        A.tag('job%d' % j)

    def convert(j, slot):
        m, c = jobs[j]
        for t in range(2):
            for Q in range(4):
                A('ds_read_b64_tr_b16 %s, v%d offset:%d' % (r(loc[(m, t, c)] + 2 * Q, 2), TA, slot * 4096 + (32 * (Q >> 1) + 2 * (Q & 1)) * 64 + 32 * t))
    job_loader(A, 20, 10, S_LW, issue, convert)
    A.mark(1)
    check()
    A('s_and_b32 s%d, s%d, 1\ns_lshl_b32 s%d, s%d, 13\ns_add_u32 s%d, s%d, 16384' % (S_MR, S_T1, S_MR, S_MR, S_MR2, S_MR))
    lane_id(A, L)
    A('v_lshrrev_b32 v%d, 4, v%d\nv_and_b32 v%d, 15, v%d' % (GG, L, N, L))
    A('v_lshlrev_b32 v%d, 4, v%d\ns_lshl_b32 s%d, s%d, 10\nv_add_u32 v%d, s%d, v%d' % (LIN, L, S_T0, S_W, XW, S_T0, LIN))
    A('v_lshrrev_b32 v%d, 2, v%d\nv_add_u32 v%d, 4096, v%d' % (Q4, XW, Q4, Q4))
    A('v_bfe_u32 v%d, v%d, 2, 1\nv_lshlrev_b32 v%d, 7, v%d\nv_lshl_add_u32 v%d, v%d, 8, v%d' % (T1, N, T1, T1, T1, GG, T1))
    A('v_lshrrev_b32 v%d, 3, v%d\nv_lshl_add_u32 v%d, v%d, 6, v%d' % (T2, N, T1, T2, T1))
    A('v_and_b32 v%d, 1, v%d\nv_lshl_add_u32 v%d, v%d, 5, v%d' % (T2, N, T1, T2, T1))
    A('v_bfe_u32 v%d, v%d, 1, 1\nv_lshl_add_u32 v%d, v%d, 4, v%d' % (T2, N, VA_, T2, T1))
    A('v_mul_u32_u24 v%d, 0xaaaa, v%d\nv_add_u32 v%d, 0x4444, v%d' % (T2, T2, IDX, T2))
    A('s_and_b32 s%d, s%d, 1\ns_lshr_b32 s%d, s%d, 1' % (S_U, S_W, S_T2, S_W))
    A('s_lshl_b32 s%d, s%d, 11\nv_add_u32 v%d, s%d, v%d' % (S_T0, S_T2, VR2, S_T0, LIN))
    A('v_lshrrev_b32 v%d, 3, v%d\nv_lshlrev_b32 v%d, 16, v%d\nv_lshl_add_u32 v%d, v%d, 8, v%d' % (T1, N, T1, T1, T1, GG, T1))
    A('v_and_b32 v%d, 7, v%d\nv_lshl_add_u32 v%d, v%d, 4, v%d' % (T2, N, OAD, T2, T1))
    A('s_lshl_b32 s%d, s%d, 17\ns_lshl_b32 s%d, s%d, 11\ns_add_u32 s%d, s%d, s%d' % (S_OO, S_U, S_T0, S_R, S_OO, S_OO, S_T0))
    A('s_lshl_b32 s%d, s%d, 10\ns_add_u32 s%d, s%d, s%d\ns_add_u32 s%d, s%d, %d' % (S_T0, S_T2, S_OO, S_OO, S_T0, S_OO, S_OO, OA))
    A('s_lshl_b32 s%d, s%d, 13\ns_add_u32 s%d, s%d, %d' % (S_T0, S_R, S_KO, S_T0, KA))
    A('s_lshl_b32 s%d, s%d, 10\ns_add_u32 s%d, s%d, s%d\ns_add_u32 s%d, s%d, %d' % (S_QO, S_U, S_QO, S_QO, S_T0, S_QO, S_QO, QA))
    A('s_lshl_b32 s%d, s%d, 12\ns_add_u32 s%d, s%d, s%d\ns_add_u32 s%d, s%d, %d' % (S_VO, S_T2, S_VO, S_VO, S_T0, S_VO, S_VO, VA))
    A('s_lshl_b32 s%d, s%d, 7\ns_add_u32 s%d, s%d, %d' % (S_F1, S_R, S_F1, S_F1, F1))
    A('s_lshl_b32 s%d, s%d, 8\ns_lshl_b32 s%d, s%d, 3\ns_add_u32 s%d, s%d, s%d' % (S_F3, S_U, S_T0, S_R, S_F3, S_F3, S_T0))
    A('s_lshl_b32 s%d, s%d, 2\ns_add_u32 s%d, s%d, s%d\ns_add_u32 s%d, s%d, %d' % (S_T0, S_T2, S_F3, S_F3, S_T0, S_F3, S_F3, F3))
    A('s_mov_b32 s%d, 0\ns_mov_b32 s%d, 0\ns_mov_b32 s%d, 0x%x' % (S_KN, S_S, S_C, f32bits(128 ** -0.5 * math.log2(math.e))))
    A('s_lshl_b32 s%d, s%d, 4\nv_add_u32 v%d, s%d, v%d\nv_lshlrev_b32 v%d, 2, v%d\nv_sub_u32 v%d, v%d, v%d' % (S_T0, S_U, T1, S_T0, N, T2, GG, T1, T1, T2))
    for i in range(8):
        A('v_cmp_le_i32 s[%d:%d], %d, v%d' % (MASK + 2 * i, MASK + 2 * i + 1, 16 * (i >> 2) + (i & 3), T1))
    A('v_lshrrev_b32 v%d, 2, v%d\nv_cmp_eq_u32 vcc, v%d, v%d' % (T1, N, T1, GG))
    A('v_and_b32 v%d, 1, v%d\nv_lshlrev_b32 v%d, 4, v%d\nv_mov_b32 v%d, 0x3f80\nv_lshlrev_b32 v%d, v%d, v%d' % (T2, N, T2, T2, T3, T3, T2, T3))
    A('v_cndmask_b32 v%d, 0, v%d, vcc\nv_cndmask_b32 v%d, 0, v%d, vcc' % (SEL + 2, T3, SEL + 3, T3))
    for z in (SEL, SEL + 4, PZ, PZ + 4):
        A('v_mov_b64 v[%d:%d], 0' % (z, z + 1))
    for i in range(6):
        A('v_mov_b32 v%d, %s' % (HALF + i, '0x3f003f00' if i < 2 else '0x3f803f80'))
    NEG = T + 4
    A('v_mov_b32 v%d, 0xf149f2ca' % NEG)
    A('s_barrier')

    def prefetch(sfx, ahead):
        A('s_add_u32 s%d, s%d, %d\ns_cmp_ge_u32 s%d, 64\ns_cbranch_scc1 L_t_nopf%s' % (S_T2, S_S, ahead, S_T2, sfx))
        if not opt.get('noflags'):
            A('s_cmp_lt_u32 s%d, s%d\ns_cbranch_scc1 L_t_ok%s' % (S_T2, S_KN, sfx))
            A('s_mov_b32 s%d, %d' % (S_TMO, TMO))
            A('v_min_u32 v%d, 32, v%d\nv_lshlrev_b32 v%d, 8, v%d' % (T1, LIN, T1, T1))
            A.label('L_t_p' + sfx)
            A('buffer_load_dword v%d, v%d, %s, s%d offen sc1' % (T2, T1, SRD_WS, S_F1))
            A('s_sub_u32 s%d, s%d, 1\ns_cbranch_scc1 L_abort' % (S_TMO, S_TMO))
            A('s_waitcnt vmcnt(0)')
            A('v_readlane_b32 s%d, v%d, 0\nv_readlane_b32 s%d, v%d, 1\nv_readlane_b32 s%d, v%d, 2' % (S_T0, T2, S_T1, T2, S_KN, T2))
            A('s_nop 1\ns_min_u32 s%d, s%d, s%d\ns_min_u32 s%d, s%d, s%d' % (S_T0, S_T0, S_T1, S_KN, S_KN, S_T0))
            A('s_cmp_lt_u32 s%d, s%d\ns_cbranch_scc0 L_t_p%s' % (S_T2, S_KN, sfx))
            A.label('L_t_ok' + sfx)
        A('s_add_u32 s%d, s%d, 4096\ns_add_u32 s%d, s%d, 4096' % (S_T0, S_QO, S_T1, S_KO))
        for w2 in range(4):
            A('buffer_load_dwordx4 %s, v%d, %s, s%d offen offset:%d sc1' % (v(QN + 4 * w2, 4), LIN, SRD_WS, S_QO if w2 < 2 else S_T0, (w2 & 1) * 2048))
        for i in range(8):
            A('buffer_load_dwordx4 %s, v%d, %s, s%d offen offset:%d sc1' % (v(KR + 4 * i, 4), LIN, SRD_WS, S_KO if i < 4 else S_T1, (i & 3) * 1024))
        for i in range(4):
            A('buffer_load_dwordx4 %s, v%d, %s, s%d offen offset:%d sc1' % (v(VN + 4 * i, 4), LIN, SRD_WS, S_VO, i * 1024))
        for so in (S_QO, S_KO, S_VO):
            A('s_add_u32 s%d, s%d, %d' % (so, so, 32 * 8192))
        A.label('L_t_nopf' + sfx)
    prefetch('0', 0)
    A('s_waitcnt vmcnt(0)')
    A.label('L_t_loop')
    for i in range(0, 32, 2):
        A('v_mov_b64 v[%d:%d], v[%d:%d]' % (QC + i, QC + i + 1, QN + i, QN + i + 1))
    for w2 in range(4):
        for Tt in range(2):
            d = (S0, S1)[Tt]
            A('v_mfma_f32_16x16x32_bf16 %s, %s, %s, %s' % (v(d, 4), v(KR + 8 * w2 + 4 * Tt, 4), v(QC + 4 * w2, 4), v(d, 4) if w2 else '0'))
    for i in range(0, 16, 2):
        A('v_mov_b64 v[%d:%d], 0' % (ACC + i, ACC + i + 1))
    for i in range(8):
        A('v_cndmask_b32 v%d, v%d, v%d, s[%d:%d]' % (S0 + i, NEG, S0 + i, MASK + 2 * i, MASK + 2 * i + 1))
    A('s_mov_b32 s%d, %d' % (S_TMO, TMO))
    A.label('L_t_g')
    for x, so in enumerate((S_MR, S_MR2)):
        A('buffer_load_dwordx4 %s, v%d, %s, s%d offen sc1' % (v(G + 4 * x, 4), XW, SRD_WS, so))
        A('buffer_load_dword v%d, v%d, %s, s%d offen sc1' % (G + 8 + x, Q4, SRD_WS, so))
    A('s_sub_u32 s%d, s%d, 1\ns_cbranch_scc1 L_abort' % (S_TMO, S_TMO))
    A('s_waitcnt vmcnt(0)')
    A('v_max3_u32 v%d, v%d, v%d, v%d' % (T1, G, G + 1, G + 2))
    for i in range(3, 9, 2):
        A('v_max3_u32 v%d, v%d, v%d, v%d' % (T1, T1, G + i, G + i + 1))
    A('v_max_u32 v%d, v%d, v%d\nv_cmp_eq_u32 vcc, -1, v%d' % (T1, T1, G + 9, T1))
    A('s_cbranch_vccnz L_t_g')
    for x in range(2):
        A('ds_write_b128 v%d, %s offset:%d' % (XW, v(G + 4 * x, 4), L_M + 5120 * x))
        A('ds_write_b32 v%d, v%d offset:%d' % (Q4, G + 8 + x, L_M + 5120 * x))
    A('s_waitcnt lgkmcnt(0)\ns_barrier')
    for c in range(2):
        A('ds_read_b128 %s, v%d offset:%d' % (v(AB + 4 * c, 4), VA_, L_M + 1024 * c))
    prefetch('1', 1)
    A.vm = []
    for c in range(10):
        ar = AB + 4 * (c & 1)
        for k, (m, t) in enumerate((('k', 0), ('k', 1), ('v', 0), ('v', 1))):
            A('v_smfmac_f32_16x16x64_bf16 %s, %s, %s, v%d' % (v(ACC + 4 * k, 4), v(ar, 4), r(loc[(m, t, c)], 8), IDX))
        if c + 2 < 10:
            A('ds_read_b128 %s, v%d offset:%d' % (v(ar, 4), VA_, L_M + 1024 * (c + 2)))

    def cvt(d, s0):
        A('v_cvt_pk_bf16_f32 v%d, v%d, v%d' % (d, s0, s0 + 1))
    for i in range(4):
        cvt(ACC + i, ACC + 2 * i)
    A('v_mfma_f32_16x16x32_bf16 %s, %s, %s, 0' % (v(G, 4), v(ACC, 4), v(SEL + 2, 4)))
    A('v_mfma_f32_16x16x32_bf16 %s, %s, %s, 0' % (v(G + 4, 4), v(ACC, 4), v(SEL, 4)))
    for i in range(4):
        cvt(ACC + 8 + i, ACC + 8 + 2 * i)
    A('ds_write_b128 v%d, %s offset:%d' % (XW, v(ACC + 8, 4), L_V))
    for i in range(4):
        cvt(G + i, G + 2 * i)
    A('ds_write_b128 v%d, %s offset:%d' % (XW, v(G, 4), L_K))
    A('s_waitcnt lgkmcnt(0)\ns_barrier')
    for w2 in range(4):
        A('ds_read_b128 %s, v%d offset:%d' % (v(G + 4 * w2, 4), LIN, L_K + 1024 * w2))
    for i in range(2):
        A('ds_read_b128 %s, v%d offset:%d' % (v(VM_ + 4 * i, 4), VR2, L_V + 1024 * i))
    m1, m2 = T1, T2
    A('v_max3_f32 v%d, v%d, v%d, v%d' % (m1, S0, S0 + 1, S0 + 2))
    A('v_max3_f32 v%d, v%d, v%d, v%d' % (m2, S0 + 3, S0 + 4, S0 + 5))
    A('v_max3_f32 v%d, v%d, v%d, v%d' % (m1, m1, S0 + 6, S0 + 7))
    for w2 in range(4):
        A('v_mfma_f32_16x16x32_bf16 %s, %s, %s, %s' % (v(SM, 4), v(G + 4 * w2, 4), v(QC + 4 * w2, 4), v(SM, 4) if w2 else '0'))
    A('v_max3_f32 v%d, v%d, v%d, v%d' % (m2, m2, SM, SM + 1))
    A('v_max_f32 v%d, v%d, v%d\nv_max_f32 v%d, v%d, v%d' % (T3, m1, m2, m1, m1, m2))
    A('v_permlane16_swap_b32 v%d, v%d' % (m1, T3))
    A('v_max_f32 v%d, v%d, v%d\nv_max_f32 v%d, v%d, v%d' % (m2, m1, T3, m1, m1, T3))
    A('v_permlane32_swap_b32 v%d, v%d' % (m1, m2))
    A('v_max_f32 v%d, v%d, v%d\nv_mul_f32 v%d, s%d, v%d' % (m1, m1, m2, m1, S_C, m1))
    for i in range(10):
        A('v_fma_f32 v%d, v%d, s%d, -v%d' % (S0 + i, S0 + i, S_C, m1))
    for i in range(10):
        A('v_exp_f32 v%d, v%d' % (S0 + i, S0 + i))
    for i in range(4):
        cvt(PT + i, S0 + 2 * i)
    cvt(PZ + 2, SM); cvt(PZ + 3, SM)
    A('v_mfma_f32_16x16x32_bf16 %s, %s, %s, 0' % (v(SUM, 4), v(ONES, 4), v(PT, 4)))
    A('v_mfma_f32_16x16x32_bf16 %s, %s, %s, %s' % (v(SUM, 4), v(HALF, 4), v(PZ + 2, 4), v(SUM, 4)))
    for i in range(4):
        o = ACC + 4 * i
        A('v_mfma_f32_16x16x32_bf16 %s, %s, %s, 0' % (v(o, 4), v(VC + 4 * i, 4), v(PT, 4)))
        A('v_mfma_f32_16x16x32_bf16 %s, %s, %s, %s' % (v(o, 4), v(VM_ + 4 * (i >> 1), 4), v(PZ + 2 - 2 * (i & 1), 4), v(o, 4)))
        if i == 0:
            A('v_rcp_f32 v%d, v%d' % (SUM, SUM))
    for hf in range(2):
        for i in range(8):
            A('v_mul_f32 v%d, v%d, v%d' % (ACC + 8 * hf + i, ACC + 8 * hf + i, SUM))
        for i in range(4):
            cvt(G + 4 * hf + i, ACC + 8 * hf + 2 * i)
        A('buffer_store_dwordx4 %s, v%d, %s, s%d offen offset:%d sc1' % (v(G + 4 * hf, 4), OAD, SRD_WS, S_OO, 128 * hf))
    A('s_add_u32 s%d, s%d, 1\nv_mov_b32 v%d, s%d' % (S_S, S_S, T1, S_S))
    A('s_add_u32 s%d, s%d, 32768\ns_add_u32 s%d, s%d, 32768\ns_add_u32 s%d, s%d, %d' % (S_MR, S_MR, S_MR2, S_MR2, S_OO, S_OO, 4 * 65536))
    A('s_waitcnt vmcnt(0)')
    A('buffer_store_dword v%d, off, %s, s%d sc1' % (T1, SRD_WS, S_F3))
    A('s_cmp_lt_u32 s%d, 64\ns_cbranch_scc1 L_t_loop' % S_S)
    A.mark(6)
    A('s_endpgm')


def role_o(A, opt):
    LIN, XW, RD, OAD, IDX, FA, T = 0, 1, 2, 3, 4, 5, 6
    ACC, R8, BUF = 12, 20, (32, 96)
    S_LW, S_WO, S_RQ, S_CG, S_IO, S_OO, S_F3, S_KN, S_S, S_PF = range(37, 47)
    A('s_cmp_ge_u32 s%d, 80\ns_cbranch_scc1 L_abort' % S_R)
    A('s_mul_i32 s%d, s%d, 205\ns_lshr_b32 s%d, s%d, 12\ns_mul_i32 s%d, s%d, 20\ns_sub_u32 s%d, s%d, s%d' % (S_RQ, S_R, S_RQ, S_RQ, S_T0, S_RQ, S_CG, S_R, S_T0))
    srd(A, 8, 40, 5242880)
    srd(A, 24, 80, 2048 * 2560)
    L, GG, N, DA, TA = 20, 21, 22, 23, 24
    T1, T2, T3 = T, T + 1, T + 2
    lane_id(A, L)
    A('v_lshrrev_b32 v%d, 4, v%d\nv_and_b32 v%d, 15, v%d' % (GG, L, N, L))
    A('v_lshrrev_b32 v%d, 2, v%d\nv_mul_u32_u24 v%d, 1280, v%d\nv_and_b32 v%d, 3, v%d' % (T1, L, T1, T1, T2, L))
    A('v_lshl_add_u32 v%d, v%d, 4, v%d' % (DA, T2, T1))
    A('s_mul_i32 s%d, s%d, 40960' % (S_LW, S_W))
    A('s_mul_i32 s%d, s%d, %d\ns_lshl_b32 s%d, s%d, 6\ns_add_u32 s%d, s%d, s%d' % (S_WO, S_W, 1024 * 1280, S_T0, S_CG, S_WO, S_WO, S_T0))
    A('v_lshlrev_b32 v%d, 3, v%d\nv_add_u32 v%d, s%d, v%d' % (T3, T2, T3, S_LW, T3))
    A('v_lshrrev_b32 v%d, 3, v%d\nv_lshlrev_b32 v%d, 5, v%d' % (T1, N, T1, T1))
    A('v_and_b32 v%d, 1, v%d\nv_lshl_add_u32 v%d, v%d, 4, v%d' % (T2, GG, T1, T2, T1))
    A('v_lshrrev_b32 v%d, 1, v%d\nv_lshl_add_u32 v%d, v%d, 2, v%d' % (T2, GG, T1, T2, T1))
    A('v_bfe_u32 v%d, v%d, 2, 1\nv_add_u32 v%d, v%d, v%d' % (T2, N, T1, T1, T2))
    A('v_lshl_add_u32 v%d, v%d, 6, v%d' % (TA, T1, T3))
    A('s_waitcnt lgkmcnt(0)\ns_barrier')

    def issue(j, slot):
        for i in range(4):
            A('s_add_u32 m0, s%d, %d\ns_add_u32 s%d, s%d, %d' % (S_LW, slot * 4096 + i * 1024, S_T0, S_WO, (j * 64 + 16 * i) * 1280))
            A('buffer_load_dwordx4 v%d, s[8:11], s%d offen lds' % (DA, S_T0))
        A.tag('job%d' % j)

    def convert(j, slot):
        for t in range(2):
            for Q in range(4):
                A('ds_read_b64_tr_b16 %s, v%d offset:%d' % (a(16 * j + 8 * t + 2 * Q, 2), TA, slot * 4096 + (8 * (Q >> 1) + 2 * (Q & 1)) * 64 + 32 * t))
    job_loader(A, 16, 10, S_LW, issue, convert)
    A.mark(4)
    A('v_lshlrev_b32 v%d, 4, v%d\ns_lshl_b32 s%d, s%d, 11\nv_add_u32 v%d, s%d, v%d' % (LIN, L, S_T0, S_W, XW, S_T0, LIN))
    A('v_lshrrev_b32 v%d, 3, v%d\nv_mul_u32_u24 v%d, 0xaaaa, v%d\nv_add_u32 v%d, 0x4444, v%d' % (T1, N, T1, T1, IDX, T1))
    A('v_lshrrev_b32 v%d, 5, v%d\ns_lshl_b32 s%d, s%d, 1\nv_add_u32 v%d, s%d, v%d' % (T1, L, S_T0, S_W, T1, S_T0, T1))
    A('v_and_b32 v%d, 1, v%d\nv_lshlrev_b32 v%d, 10, v%d\nv_lshl_add_u32 v%d, v%d, 4, v%d' % (T2, GG, T2, T2, T2, N, T2))
    A('v_lshrrev_b32 v%d, 2, v%d\nv_lshl_add_u32 v%d, v%d, 8, v%d' % (T3, T1, T2, T3, T2))
    A('v_and_b32 v%d, 3, v%d\nv_lshl_add_u32 v%d, v%d, 2, v%d' % (T3, T1, RD, T3, T2))
    A('v_mul_u32_u24 v%d, 2560, v%d\nv_and_b32 v%d, 31, v%d\nv_lshl_add_u32 v%d, v%d, 1, v%d' % (T1, T1, T2, L, OAD, T2, T1))
    A('v_lshlrev_b32 v%d, 2, v%d' % (FA, N))
    A('s_mul_i32 s%d, s%d, %d\ns_lshl_b32 s%d, s%d, 6\ns_add_u32 s%d, s%d, s%d' % (S_OO, S_RQ, 8 * 2560, S_T0, S_CG, S_OO, S_OO, S_T0))
    A('s_lshl_b32 s%d, s%d, 16\ns_lshl_b32 s%d, s%d, 14\ns_add_u32 s%d, s%d, s%d\ns_add_u32 s%d, s%d, %d' % (S_IO, S_RQ, S_T0, S_W, S_IO, S_IO, S_T0, S_IO, S_IO, OA))
    A('s_lshr_b32 s%d, s%d, 1\ns_lshl_b32 s%d, s%d, 8\ns_lshl_b32 s%d, s%d, 6\ns_add_u32 s%d, s%d, s%d\ns_add_u32 s%d, s%d, %d' % (S_F3, S_RQ, S_F3, S_F3, S_T0, S_W, S_F3, S_F3, S_T0, S_F3, S_F3, F3))
    A('s_mov_b32 s%d, 0\ns_mov_b32 s%d, 0\ns_mov_b32 s%d, 0' % (S_KN, S_S, S_PF))
    A('s_barrier')

    def loads(buf, so):
        for q in range(4):
            if q:
                A('s_add_u32 s%d, s%d, %d' % (S_T1, so, 4096 * q))
            for i in range(4):
                A('buffer_load_dwordx4 %s, v%d, %s, s%d offen offset:%d sc1' % (v(buf + 16 * q + 4 * i, 4), LIN, SRD_WS, S_T1 if q else so, 1024 * i))
    A.label('L_o_loop')
    for par in range(2):
        sf = str(par)
        A.auto = False
        A('s_cmp_lg_u32 s%d, 0\ns_cbranch_scc1 L_o_have%s' % (S_PF, sf))
        A('s_mov_b32 s%d, %d' % (S_TMO, TMO))
        A.label('L_o_p' + sf)
        A('buffer_load_dword v%d, v%d, %s, s%d offen sc1' % (T1, FA, SRD_WS, S_F3))
        A('s_sub_u32 s%d, s%d, 1\ns_cbranch_scc1 L_abort' % (S_TMO, S_TMO))
        A('s_waitcnt vmcnt(0)')
        A('v_cmp_ge_u32 vcc, s%d, v%d' % (S_S, T1))
        A('s_cbranch_vccnz L_o_p' + sf)
        loads(BUF[par], S_IO)
        for sh in (8, 4, 2, 1):
            A('v_min_u32_dpp v%d, v%d, v%d row_ror:%d row_mask:0xf bank_mask:0xf' % (T1, T1, T1, sh))
        A('v_readfirstlane_b32 s%d, v%d' % (S_KN, T1))
        A.label('L_o_have' + sf)
        A('s_add_u32 s%d, s%d, %d\ns_add_u32 s%d, s%d, 1' % (S_IO, S_IO, 4 * 65536, S_S, S_S))
        A('s_cmp_lt_u32 s%d, s%d\ns_cselect_b32 s%d, 1, 0\ns_cselect_b32 s%d, s%d, %d' % (S_S, S_KN, S_PF, S_T0, S_IO, OOB))
        loads(BUF[1 - par], S_T0)
        for i in range(0, 8, 2):
            A('v_mov_b64 v[%d:%d], 0' % (ACC + i, ACC + i + 1))
        for j in range(16):
            A('s_waitcnt vmcnt(%d)' % (31 - j))
            for t in range(2):
                A('v_smfmac_f32_16x16x64_bf16 %s, %s, %s, v%d' % (v(ACC + 4 * t, 4), v(BUF[par] + 4 * j, 4), a(16 * j + 8 * t, 8), IDX))
        A.auto = True
        A.vm = []
        A.lg = []
        for t in range(2):
            A('ds_write_b128 v%d, %s offset:%d' % (XW, v(ACC + 4 * t, 4), par * 8192 + 1024 * t))
        A('s_waitcnt lgkmcnt(0)\ns_barrier')
        for w2 in range(4):
            o = (par * 8192 + w2 * 2048) // 256
            A('ds_read2st64_b32 %s, v%d offset0:%d offset1:%d' % (v(R8 + 2 * w2, 2), RD, o, o + 2))
        A('v_pk_add_f32 %s, %s, %s' % (v(R8, 2), v(R8, 2), v(R8 + 2, 2)))
        A('v_pk_add_f32 %s, %s, %s' % (v(R8 + 4, 2), v(R8 + 4, 2), v(R8 + 6, 2)))
        A('v_pk_add_f32 %s, %s, %s' % (v(R8, 2), v(R8, 2), v(R8 + 4, 2)))
        A('v_add_f32 v%d, v%d, v%d' % (R8, R8, R8 + 1))
        A('v_cvt_pk_bf16_f32 v%d, v%d, v%d' % (T2, R8, R8))
        A('buffer_store_short v%d, v%d, s[24:27], s%d offen' % (T2, OAD, S_OO))
        A('s_add_u32 s%d, s%d, 81920' % (S_OO, S_OO))
    A('s_cmp_lt_u32 s%d, 64\ns_cbranch_scc1 L_o_loop' % S_S)
    A.mark(6)
    A('s_endpgm')
```

```python
KNAME = 'concat_heads__memory_aug_recurrent_mem_tr__sliding_block__prompt_kernel'
WS_BYTES = 268435456
MREM = 0x000000
MLOC = 0x220000
PART = 0x240000
PART_STRIDE = 0x28000
COMM_ALT = 0x100000
FLAGS = 0x200000
F1 = FLAGS
F2 = FLAGS + 96 * 128
F3 = FLAGS + 128 * 128
PROBE = 0x210000
QA = 0x1000000
KA = 0x2000000
VA = 0x3000000
KM = 0x4000000
VM = 0x4800000
OA = 0x5000000
QB = 0x6000000
KB = 0x6400000
VB = 0x6800000
OB = 0x6C00000
STAMP = 0x8000000
D_TICK0 = 0
D_TICK1 = 64
D_TICKB = 128
D_ARR = 192
D_ARR2 = 196
D_SEL = 200
D_BAR1 = 204
D_BAR2 = 208
LDS_BYTES = 163840
```

```python
import sys
sys.path.insert(0, 'work')
from asmdsl import *
from layout import *
from gen_rec import *
import gen_bulk, gen_tok
from gen_bulk import arrive, lane_id, OOB

HEADER = open('concat_heads__memory_aug_recurrent_mem_tr__sliding_block__prompt.s.ref').read().split('; Override launch')[0]
DEFAULT = {'odelay': 48, 'odepth': 2, 'rdepth': 2, 'rgap': 16}


def generate(opt_in):
    opt = dict(DEFAULT)
    opt.update(opt_in)
    A = Asm()

    def tstamp(i):
        if opt.get('marks'):
            A('s_memrealtime s[98:99]\ns_waitcnt lgkmcnt(0)\nv_mov_b32 v15, s98')
            A('s_lshl_b32 s98, s100, 6\ns_add_u32 s98, s98, %d' % (STAMP + 0x200000 + 4 * i))
            A('buffer_store_dword v15, off, %s, s98' % SRD_WS)
    A.mark = tstamp

    def check(need_sel=False):
        done, lab, lab2 = A.newlabel('L_cd'), A.newlabel('L_c'), A.newlabel('L_cs')
        A('s_mov_b32 s%d, 0' % S_T1)
        A('s_cmp_lg_u32 s%d, 0\ns_cbranch_scc1 %s' % (S_COMM, done))
        A('s_mov_b32 s%d, %d' % (S_TMO, TMO))
        lane_id(A, 15)
        A('v_lshlrev_b32 v15, 2, v15')
        A.label(lab)
        A('buffer_load_dword v14, v15, %s, 0 offen sc1' % SRD_DBG)
        A('s_sub_u32 s%d, s%d, 1\ns_cbranch_scc1 L_abort' % (S_TMO, S_TMO))
        A('s_waitcnt vmcnt(0)')
        A('v_readlane_b32 s%d, v14, %d\nv_readlane_b32 s%d, v14, %d' % (S_T0, D_ARR // 4, S_T1, D_SEL // 4))
        A('v_cmp_ne_u32 vcc, 32, v14')
        A('s_cmp_lt_u32 s%d, 256\ns_cbranch_scc1 %s' % (S_T0, lab))
        bad = 's_and_b32 s%d, vcc_lo, 0x10001\ns_and_b32 s%d, vcc_hi, 0x3f\ns_or_b32 s%d, s%d, s%d' % (S_T0, S_T2, S_T0, S_T0, S_T2)
        if opt.get('force_fb'):
            bad += '\ns_or_b32 s%d, s%d, 1' % (S_T0, S_T0)
        A(bad)
        A('s_cbranch_scc0 %s' % lab2)
        A('buffer_load_dword v14, v15, %s, 0 offen sc1\ns_waitcnt vmcnt(0)\nv_cmp_ne_u32 vcc, 32, v14' % SRD_DBG)
        A(bad)
        A('s_cbranch_scc1 L_recheck')
        A.label(lab2)
        if need_sel and 'sel' not in opt:
            A('s_cmp_eq_u32 s%d, 0\ns_cbranch_scc1 %s' % (S_T1, lab))
        if 'sel' in opt:
            A('s_mov_b32 s%d, %d' % (S_T1, opt['sel']))
        A.label(done)

    A('.amdgcn_target "amdgcn-amd-amdhsa--gfx950"\n.text\n.globl %s\n.p2align 8\n.type %s,@function' % (KNAME, KNAME))
    A.label(KNAME)
    A('s_cmp_ge_u32 s2, 256\ns_cbranch_scc1 L_exit0')
    if opt.get('stamps'):
        A('s_memtime s[92:93]')
    A('s_load_dwordx2 s[16:17], s[0:1], 88\ns_load_dwordx2 s[4:5], s[0:1], 96')
    A('s_mov_b32 s18, 256\ns_mov_b32 s19, 0x20000\ns_mov_b32 s6, %d\ns_mov_b32 s7, 0x20000' % WS_BYTES)
    A('s_getreg_b32 s20, hwreg(HW_REG_XCC_ID, 0, 3)')
    A('v_lshrrev_b32 v1, 6, v0\nv_readfirstlane_b32 s3, v1')
    A('s_lshl_b32 s33, s20, 6\ns_lshl_b32 s34, s20, 2\ns_add_u32 s34, s34, %d' % (D_TICKB - 8))
    A('s_cmp_lt_u32 s20, 2\ns_cselect_b32 s33, s33, s34')
    A('v_cmp_eq_u32 vcc, 0, v0\nv_mov_b32 v2, 0x1000\nv_mov_b32 v3, s33\nv_cndmask_b32 v2, v2, v3, vcc\nv_mov_b32 v3, 1')
    A('s_waitcnt lgkmcnt(0)')
    A('s_cmp_eq_u32 s3, 0\ns_cbranch_scc0 L_notick')
    A('buffer_atomic_add v3, v2, %s, 0 offen sc0' % SRD_DBG)
    A('v_mov_b32 v5, 0')
    A('v_readfirstlane_b32 s33, v3')
    A('v_mov_b32 v3, s33')
    A('ds_write_b32 v5, v3 offset:15872')
    A('s_lshl_b32 s33, s2, 7\ns_add_u32 s33, s33, %d' % FLAGS)
    A('v_and_b32 v4, 31, v0\nv_lshlrev_b32 v4, 2, v4')
    if not opt.get('noflags'):
        A('buffer_store_dword v5, v4, %s, s33 offen sc1' % SRD_WS)
    A('s_waitcnt lgkmcnt(0)')
    A.label('L_notick')
    A('s_barrier')
    A('v_mov_b32 v5, 0\nds_read_b32 v3, v5 offset:15872')
    A('s_lshl_b32 s33, s2, 13\ns_cmp_lt_u32 s2, 4\ns_cselect_b32 s33, 0x10000000, s33\ns_add_u32 s34, s33, 4096')
    A('v_mov_b32 v8, -1\nv_mov_b32 v9, -1\nv_mov_b32 v10, -1\nv_mov_b32 v11, -1\nv_lshlrev_b32 v6, 4, v0\nv_lshlrev_b32 v7, 2, v0')
    A('buffer_store_dwordx4 v[8:11], v6, %s, s33 offen sc1\nbuffer_store_dword v8, v7, %s, s34 offen sc1' % (SRD_WS, SRD_WS))
    A('v_and_b32 v0, 63, v0')
    A('v_readfirstlane_b32 s21, v3')
    A('s_mov_b32 s%d, 0' % S_COMM)
    if opt.get('marks'):
        A('s_lshl_b32 s100, s20, 5\ns_add_u32 s100, s100, s21')
        tstamp(0)
    A('s_cmp_lt_u32 s21, 32\ns_cbranch_scc0 L_bulk')
    A('s_cmp_lt_u32 s20, 2\ns_cbranch_scc0 L_bulk')

    def rec(sc, sfx):
        R = Rec(A, opt)
        if opt.get('stamps'):
            A('s_memtime s[94:95]')
        R.setup(sc)
        if opt.get('stamps'):
            A('s_memtime s[90:91]')
        tstamp(1)
        if sc:
            gen_bulk.await_count(A, D_ARR2, 64)
        check(True)
        A('s_and_b32 s%d, s%d, 1\ns_lshl_b32 s%d, s%d, 13' % (S_T1, S_T1, S_T1, S_T1))
        A('s_add_u32 s%d, s%d, s%d\ns_add_u32 s%d, s%d, s%d' % (S_REMR, S_REMR, S_T1, S_REMW, S_REMW, S_T1))
        if opt.get('stamps'):
            A('s_lshl_b32 s33, s20, 5\ns_add_u32 s33, s33, s21\ns_lshl_b32 s33, s33, 2\ns_add_u32 s33, s33, s3')
            A('s_mul_i32 s%d, s33, %d\ns_add_u32 s%d, s%d, %d\ns_mov_b32 s97, 0' % (S_STOFF, 65 * 64, S_STOFF, S_STOFF, STAMP))
            A('s_memtime s[88:89]\ns_waitcnt lgkmcnt(0)')
            A('v_mov_b32 v20, s92\nv_mov_b32 v21, s94\nv_mov_b32 v22, s90\nv_mov_b32 v23, s88\nv_mov_b32 v24, 0')
            A('buffer_store_dwordx4 v[20:23], v24, %s, s%d offen' % (SRD_WS, S_STOFF))
            A('s_add_u32 s%d, s%d, 64' % (S_STOFF, S_STOFF))
        if opt.get('only'):
            A('s_cmp_ge_u32 s21, %d\ns_cbranch_scc1 L_abort' % opt['only'])
        R.kv_ready(lambda n: 'R%si_%s' % (sfx, n), 'i', 1)
        tstamp(2)
        R.loop(sc, sfx)
    rec('', 'f')
    A.label('L_exit0')
    A('s_endpgm')
    A.label('L_bulk')
    arrive(A, D_ARR)
    if opt.get('reconly'):
        A('s_endpgm')
    A('s_cmp_lt_u32 s21, 32\ns_cbranch_scc0 L_norole')
    A.label('L_dispatch')
    A('s_cmp_eq_u32 s20, 2\ns_cbranch_scc1 L_role_t')
    A('s_cmp_eq_u32 s20, 7\ns_cbranch_scc1 L_role_b')
    A('s_cmp_eq_u32 s20, 3\ns_cbranch_scc0 L_role_p')
    A('s_add_u32 s21, s21, 32')
    A('s_cmp_eq_u32 s21, 63\ns_cbranch_scc0 L_role_b')
    A('s_or_b32 s33, s3, s%d\ns_cmp_eq_u32 s33, 0\ns_cbranch_scc0 L_role_b' % S_COMM)
    A('s_mov_b32 s37, -1\ns_mov_b32 s38, -1\ns_mov_b32 s39, 6144\nv_mov_b32 v14, 0')
    A.label('L_probe')
    for k in range(2):
        A('s_memtime s[40:41]\ns_waitcnt lgkmcnt(0)')
        A('buffer_store_dword v14, off, %s, s39 sc1\ns_waitcnt vmcnt(0)' % SRD_WS)
        A('s_memtime s[42:43]\ns_waitcnt lgkmcnt(0)')
        A('s_sub_u32 s42, s42, s40\ns_min_u32 s%d, s%d, s42\ns_add_u32 s39, s39, 8192' % (37 + k, 37 + k))
    A('s_cmp_lt_u32 s39, %d\ns_cbranch_scc1 L_probe' % (opt.get('nprobe', 8) * 16384))
    A('s_cmp_lt_u32 s38, s37\ns_cselect_b32 s37, 3, 2\nv_mov_b32 v14, s37')
    A('buffer_store_dword v14, off, %s, 0 offset:%d sc1' % (SRD_DBG, D_SEL))
    A.label('L_role_b')
    gen_bulk.role_b(A, check, opt)
    A.label('L_abort')
    tstamp(7)
    A('s_endpgm')
    A.label('L_role_p')
    A('s_sub_u32 s33, s20, 4\ns_lshl_b32 s33, s33, 5\ns_add_u32 s21, s21, s33')
    gen_bulk.role_p(A, check)
    tstamp(3)
    gen_tok.role_o(A, opt)
    A.label('L_role_t')
    gen_tok.role_t(A, lambda: check(True), opt)
    A.label('L_norole')
    check()
    A.label('L_recheck')
    A('s_waitcnt vmcnt(0) lgkmcnt(0)\ns_barrier')
    A('s_lshr_b32 s20, s2, 5\ns_and_b32 s21, s2, 31\ns_mov_b32 s%d, %d' % (S_COMM, COMM_ALT))
    A('s_cmp_lt_u32 s20, 2\ns_cbranch_scc0 L_dispatch')
    lane_id(A, 0)
    rec(' sc1', 'g')
    A.pad(verbose=opt.get('verbose'))
    txt = HEADER + '; @launch grid=(256,1,1) block=(256,1,1) lds=%d\n' % LDS_BYTES + A.text()
    txt += '''.section .rodata,"a"
.p2align 6
.amdhsa_kernel %s
  .amdhsa_next_free_vgpr 512
  .amdhsa_next_free_sgpr 102
  .amdhsa_accum_offset 256
  .amdhsa_group_segment_fixed_size 0
  .amdhsa_kernarg_size 104
  .amdhsa_user_sgpr_count 2
  .amdhsa_user_sgpr_kernarg_segment_ptr 1
  .amdhsa_system_sgpr_workgroup_id_x 1
  .amdhsa_float_denorm_mode_32 3
.end_amdhsa_kernel
''' % KNAME
    return txt


if __name__ == '__main__':
    import json, time
    o = json.loads(sys.argv[1]) if len(sys.argv) > 1 else {}
    o['verbose'] = 1
    t0 = time.time()
    t = generate(o)
    out = sys.argv[2] if len(sys.argv) > 2 else 'out.s'
    open(out, 'w').write(t)
    from runner import *
    co = build(t, KNAME, 13, 'out_k')
    print(len(t), 'bytes', t.count('\n'), 'lines', time.time() - t0)
    print(cl.address_register_problem(co, KNAME), time.time() - t0)
```
